```python
import torch

def _softmax(x, axis=-1):
    return torch.softmax(x, dim=axis)
def _gelu(x):
    return torch.nn.functional.gelu(x, approximate="tanh")
def _silu(x):
    return torch.nn.functional.silu(x)
def _sigmoid(x):
    return torch.sigmoid(x)
def _layernorm(x, axis=-1, eps=1e-5):
    m = x.mean(dim=axis, keepdim=True)
    v = x.var(dim=axis, keepdim=True, unbiased=False)
    return (x - m) / torch.sqrt(v + eps)
def _scatter_add(tgt, idx, src, axis=0):
    return tgt.clone().index_add_(axis, idx, src)
def _segment_sum(src, seg, n):
    out = torch.zeros((n,) + src.shape[1:], dtype=src.dtype)
    return out.index_add_(0, seg, src)
def _pad(x, pw):
    flat = tuple(v for pair in reversed(pw) for v in pair)
    return torch.nn.functional.pad(x, flat)

kernel_name = 'parallel_sum__softmax_full_mha__swiglu_ffn__prompt'

def setup_inputs():

    _w = (lambda a: (lambda t: t.to(torch.bfloat16) if t.is_floating_point() else t)(torch.as_tensor(a)))
    def _A_setup():
        B, S, D = 1, 2048, 1024
        return {
            "x": _w((lambda *s: torch.randn(*s, dtype=torch.bfloat16) * 0.05)(B, S, D)),
            "wqkv": _w((lambda *s: torch.randn(*s, dtype=torch.bfloat16) * 0.05)(D, 3 * D)),
            "wo": _w((lambda *s: torch.randn(*s, dtype=torch.bfloat16) * 0.05)(D, D)),
        }
    _A_in = _A_setup()

    def _B_setup():
        B, S, D, F = 1, 2048, 1024, 3584
        return {
            "x": _w((lambda *s: torch.randn(*s, dtype=torch.bfloat16) * 0.05)(B, S, D)),
            "w_gate": _w((lambda *s: torch.randn(*s, dtype=torch.bfloat16) * 0.05)(D, F)),
            "w_up": _w((lambda *s: torch.randn(*s, dtype=torch.bfloat16) * 0.05)(D, F)),
            "w_down": _w((lambda *s: torch.randn(*s, dtype=torch.bfloat16) * 0.05)(F, D)),
        }
    _B_in = _B_setup()

    return {
        "A_x": _A_in["x"],
        "A_wqkv": _A_in["wqkv"],
        "A_wo": _A_in["wo"],
        "B_x": _B_in["x"],
        "B_w_gate": _B_in["w_gate"],
        "B_w_up": _B_in["w_up"],
        "B_w_down": _B_in["w_down"],
    }

def reference(A_x, A_wqkv, A_wo, B_x, B_w_gate, B_w_up, B_w_down):
    def _A_ref(x, wqkv, wo):
        B, S, D = x.shape
        H = 32; Dh = D // H
        qkv = (lambda x, *d: x.permute(*d))((x @ wqkv).reshape(B, S, 3, H, Dh), 2, 0, 3, 1, 4)
        q, k, v = qkv[0], qkv[1], qkv[2]
        scale = Dh ** -0.5
        scores = torch.einsum("bhqd,bhkd->bhqk", q, k) * scale
        p = _softmax(scores, axis=-1)
        o = torch.einsum("bhqk,bhkd->bhqd", p, v)
        return (lambda x, *d: x.permute(*d))(o, 0, 2, 1, 3).reshape(B, S, D) @ wo

    def _B_ref(x, w_gate, w_up, w_down):
        g = _silu(x @ w_gate)
        u = x @ w_up
        return (g * u) @ w_down

    x = A_x
    xn = _layernorm(x, axis=-1)
    return x + _A_ref(xn, A_wqkv, A_wo) + _B_ref(xn, B_w_gate, B_w_up, B_w_down)
```

```python
import re

TRANS = ("v_exp_f32", "v_log_f32", "v_rcp_f32", "v_rsq_f32", "v_sqrt_f32", "v_sin_f32", "v_cos_f32", "v_exp_f16")


def R(f, n, cnt=1):
    return f"{f}{n}" if cnt == 1 else f"{f}[{n}:{n + cnt - 1}]"


_reg_re = re.compile(r"^(-|\|)?([vas])(?:(\d+)|\[(\d+):(\d+)\])\|?$")


def regs_of(tok):
    tok = tok.strip()
    m = re.match(r"^(?:neg|abs)\((.*)\)$", tok)
    if m:
        tok = m.group(1)
    m = _reg_re.match(tok)
    if m:
        f = m.group(2)
        if m.group(3) is not None:
            return {(f, int(m.group(3)))}
        return {(f, i) for i in range(int(m.group(4)), int(m.group(5)) + 1)}
    if tok in ("vcc", "exec", "m0", "scc"):
        return {(tok, 0)}
    if tok in ("vcc_lo", "vcc_hi"):
        return {("vcc", 0)}
    if tok in ("exec_lo", "exec_hi"):
        return {("exec", 0)}
    return set()


class I:
    __slots__ = ("text", "op", "kind", "dst", "src", "srcC", "srcAB", "passes", "tag", "need", "store_data", "comment", "states")

    def __init__(self, text, tag=None, need=None):
        self.text = text.strip()
        self.tag = tag
        self.need = need
        self.dst = set(); self.src = set(); self.srcC = set(); self.srcAB = set(); self.store_data = set()
        self.passes = 0
        self.states = 1
        t = self.text.split(";")[0].strip()
        if t.endswith(":"):
            self.op = "label"; self.kind = "label"; self.states = 0
            return
        if t.startswith("."):
            self.op = "directive"; self.kind = "label"; self.states = 0
            return
        parts = t.split(None, 1)
        op = parts[0]
        self.op = op
        rest = parts[1] if len(parts) > 1 else ""
        ops = []
        depth = 0; cur = ""
        for ch in rest:
            if ch in "[(": depth += 1
            if ch in "])": depth -= 1
            if ch == "," and depth == 0:
                ops.append(cur.strip()); cur = ""
            else:
                cur += ch
        if cur.strip(): ops.append(cur.strip())
        mods = []
        if ops:
            sp = ops[-1].split()
            ops[-1] = sp[0]; mods = sp[1:]
        rs = [regs_of(o) for o in ops]
        base = op
        for suf in ("_e32", "_e64", "_dpp", "_sdwa"):
            if base.endswith(suf): base = base[: -len(suf)]
        if op in ("WAITVM", "WAITLG", "NOPAD"):
            self.kind = "pseudo"; self.states = 0
        elif op.startswith("v_mfma") or op.startswith("v_smfmac"):
            self.kind = "mfma"
            self.passes = 8 if "32x32" in op else 4
            if op.startswith("v_smfmac"):
                self.dst = rs[0]; self.srcC = rs[0]; self.srcAB = rs[1] | rs[2] | rs[3]
                self.passes = 8 if ("32x32" in op or "x64_bf16" in op) else 4
            else:
                self.dst = rs[0]; self.srcAB = rs[1] | rs[2]; self.srcC = rs[3]
            self.src = self.srcAB | self.srcC
        elif op.startswith("v_cmp"):
            self.kind = "valu"; self.dst = rs[0]; self.src = set().union(*rs[1:])
            if op.startswith("v_cmpx"): self.dst = self.dst | {("exec", 0)}
        elif base in ("v_readfirstlane_b32", "v_readlane_b32"):
            self.kind = "valu"; self.dst = rs[0]; self.src = set().union(*rs[1:])
        elif base in ("v_add_co_u32", "v_sub_co_u32"):
            self.kind = "valu"; self.dst = rs[0] | rs[1]; self.src = set().union(*rs[2:])
        elif base in ("v_addc_co_u32", "v_subb_co_u32"):
            self.kind = "valu"; self.dst = rs[0] | rs[1]; self.src = set().union(*rs[2:])
        elif base in ("v_permlane32_swap_b32", "v_permlane16_swap_b32", "v_swap_b32"):
            self.kind = "valu"; self.dst = rs[0] | rs[1]; self.src = rs[0] | rs[1]
        elif op.startswith("v_"):
            self.kind = "trans" if base in TRANS else "valu"
            self.dst = rs[0]; self.src = set().union(*rs[1:]) if len(rs) > 1 else set()
            if base in ("v_fmac_f32", "v_dot2c_f32_bf16", "v_writelane_b32") or "dst_unused:UNUSED_PRESERVE" in mods:
                self.src = self.src | rs[0]
            if op.endswith("_dpp") or any(m.startswith(("row_", "quad_perm", "wave_")) for m in mods):
                self.src = self.src | rs[0]
            if base == "v_cndmask_b32" and len(ops) == 3:
                self.src = self.src | {("vcc", 0)}
        elif op.startswith("ds_read") or op.startswith("ds_bpermute") or op.startswith("ds_swizzle") or op.startswith("ds_permute"):
            self.kind = "ds_rd"; self.dst = rs[0]; self.src = set().union(*rs[1:])
        elif op.startswith("ds_write") or op.startswith("ds_add") or op.startswith("ds_max") or op.startswith("ds_or"):
            self.kind = "ds_wr"; self.src = set().union(*rs)
        elif op.startswith("buffer_load") or op.startswith("global_load"):
            if "lds" in mods:
                self.kind = "vm_dma"; self.src = set().union(*rs) | {("m0", 0)}
            else:
                self.kind = "vm_ld"; self.dst = rs[0]; self.src = set().union(*rs[1:])
        elif op.startswith("buffer_store"):
            self.kind = "vm_st"; self.src = set().union(*rs)
            if len(rs[0]) >= 3: self.store_data = rs[0]
        elif op.startswith("global_store"):
            self.kind = "vm_st"; self.src = set().union(*rs)
            if len(rs[1]) >= 3: self.store_data = rs[1]
        elif op.startswith("buffer_atomic"):
            self.kind = "vm_st"; self.src = set().union(*rs)
            if "sc0" in mods:
                self.kind = "vm_ld"; self.dst = rs[0]
        elif op in ("buffer_inv", "buffer_wbl2"):
            self.kind = "vm_st"
        elif op.startswith("s_load") or op in ("s_memtime", "s_memrealtime"):
            self.kind = "smem"; self.dst = rs[0]; self.src = set().union(*rs[1:]) if len(rs) > 1 else set()
        elif op == "s_waitcnt":
            self.kind = "wait"
        elif op == "s_barrier":
            self.kind = "barrier"
        elif op == "s_nop":
            self.kind = "nop"; self.states = int(ops[0]) + 1
        elif op.startswith("s_cbranch") or op == "s_branch" or op == "s_endpgm":
            self.kind = "branch"
        elif op.startswith("s_cmp") or op.startswith("s_bitcmp"):
            self.kind = "salu"; self.src = set().union(*rs); self.dst = {("scc", 0)}
        elif op in ("s_setprio", "s_sleep"):
            self.kind = "salu"
        elif op.startswith("s_"):
            self.kind = "salu"; self.dst = set(rs[0]); self.src = set().union(*rs[1:]) if len(rs) > 1 else set()
            if "saveexec" in op: self.dst |= {("exec", 0)}
        else:
            raise ValueError("unknown instr: " + text)

    def __repr__(self):
        return self.text


def ins(text, tag=None):
    return I(text, tag=tag)


def WAITVM(tag):
    x = I("WAITVM"); x.need = {tag} if isinstance(tag, str) else set(tag)
    return x


def WAITLG(tag=None):
    x = I("WAITLG"); x.need = None if tag is None else ({tag} if isinstance(tag, str) else set(tag))
    return x


def block(text):
    out = []
    for l in text.split("\n"):
        s = l.split(";")[0].strip()
        if s: out.append(I(l.strip()))
    return out


VM = ("vm_ld", "vm_dma", "vm_st")
LG = ("ds_rd", "ds_wr")


def _parse_wait(text):
    vm = re.search(r"vmcnt\((\d+)\)", text); lg = re.search(r"lgkmcnt\((\d+)\)", text)
    return (int(vm.group(1)) if vm else None, int(lg.group(1)) if lg else None)


class Program:
    def __init__(self):
        self.layout = []
        self.traces = []
        self.waits = {}
        self.nops = {}

    def add(self, *lists):
        for l in lists:
            if isinstance(l, I): self.layout.append(l)
            else: self.layout.extend(l)

    def trace(self, *lists):
        t = []
        for l in lists:
            if isinstance(l, I): t.append(l)
            else: t.extend(l)
        self.traces.append(t)

    def _req(self, x, vm=None, lg=None):
        w = self.waits.setdefault(id(x), [None, None])
        if vm is not None:
            vm = min(vm, 63); w[0] = vm if w[0] is None else min(w[0], vm)
        if lg is not None:
            lg = min(lg, 15); w[1] = lg if w[1] is None else min(w[1], lg)

    def _waits_on(self, tr):
        vq = []; lq = []; smem = []
        for x in tr:
            touched = x.src | x.dst
            nv = nl = None
            if x.kind == "pseudo":
                if x.op == "WAITVM":
                    idx = [k for k, o in enumerate(vq) if o.tag in x.need]
                    if idx: nv = len(vq) - 1 - idx[-1]
                elif x.op == "WAITLG":
                    if x.need is None:
                        if lq or smem: nl = 0
                    else:
                        idx = [k for k, o in enumerate(lq) if o.tag in x.need]
                        if idx: nl = len(lq) - 1 - idx[-1]
            elif touched:
                idx = [k for k, o in enumerate(vq) if o.dst & touched]
                if idx: nv = len(vq) - 1 - idx[-1]
                idx = [k for k, o in enumerate(lq) if o.dst & touched]
                if idx: nl = len(lq) - 1 - idx[-1]
                if any(o.dst & touched for o in smem): nl = 0
            if smem and nl is not None: nl = 0
            if nv is not None or nl is not None: self._req(x, nv, nl)
            w = self.waits.get(id(x))
            if x.kind == "wait": w = _parse_wait(x.text)
            if w:
                if w[0] is not None and len(vq) > w[0]: vq = vq[len(vq) - w[0]:] if w[0] else []
                if w[1] is not None:
                    if w[1] == 0: lq = []; smem = []
                    elif not smem and len(lq) > w[1]: lq = lq[len(lq) - w[1]:]
            if x.kind in VM: vq.append(x)
            elif x.kind in LG: lq.append(x)
            elif x.kind == "smem": smem.append(x)

    @staticmethod
    def _need(p, c):
        n = 0
        pv = p.kind in ("valu", "trans")
        cv = c.kind in ("valu", "trans")
        cvm = c.kind in VM
        vreg = lambda s: {r for r in s if r[0] in "va" and len(r[0]) == 1}
        sreg = lambda s: {r for r in s if r[0] in ("s", "vcc")}
        if p.kind == "mfma":
            big = 12 if p.passes == 8 else 8
            if c.kind == "mfma":
                if p.dst & c.srcAB: n = max(n, big)
                if p.dst & c.srcC:
                    if not (p.dst == c.srcC and p.passes == c.passes): n = max(n, big - 2)
                elif p.dst & c.dst: n = max(n, big - 2)
            elif cv or cvm or c.kind in LG:
                if p.dst & (c.src | c.dst): n = max(n, big)
                if cv and (p.srcC & c.dst): n = max(n, 7 if p.passes == 8 else 3)
        if pv:
            if c.kind == "mfma" and vreg(p.dst) & c.src: n = max(n, 2)
            if c.kind == "mfma" and ("exec", 0) in p.dst: n = max(n, 4)
            if cvm and sreg(p.dst) & c.src: n = max(n, 5)
            if cv and sreg(p.dst) & c.src: n = max(n, 4 if "lane" in c.op else 2)
            if c.kind == "salu" and sreg(p.dst) & c.src: n = max(n, 1)
            if c.op.startswith(("v_readfirstlane", "v_readlane")) and vreg(p.dst) & c.src: n = max(n, 1)
            if c.op.startswith("v_permlane") and vreg(p.dst) & c.src: n = max(n, 2)
            if cv and ("dpp" in c.op or "row_" in c.text or "quad_perm" in c.text) and vreg(p.dst) & c.src: n = max(n, 2)
            if cv and ("exec", 0) in p.dst: n = max(n, 5)
            if p.kind == "trans" and c.kind == "valu" and p.dst & c.src: n = max(n, 1)
            if ("sdwa" in p.op or "op_sel" in p.text) and not p.op.startswith("v_pk") and cv and p.dst & (c.src | c.dst): n = max(n, 1)
            if c.kind == "branch" and c.op.startswith("s_cbranch_vcc") and ("vcc", 0) in p.dst: n = max(n, 5)
        if p.kind == "salu" and ("m0", 0) in p.dst and c.kind == "vm_dma": n = max(n, 1)
        if p.store_data and (p.store_data & c.dst) and c.kind != "vm_ld" and c.kind != "ds_rd": n = max(n, 2)
        if p.store_data and (p.store_data & c.dst): n = max(n, 1)
        return n

    def _nops_on(self, tr):
        hist = []
        for x in tr:
            if x.kind in ("label",): continue
            extra = 1 if id(x) in self.waits and any(v is not None for v in self.waits[id(x)]) else 0
            if x.kind == "pseudo":
                if extra:
                    hist = [(p, d + 1) for p, d in hist]
                continue
            have = self.nops.get(id(x), 0)
            need = 0
            for p, d in hist:
                k = self._need(p, x) - (d + extra)
                if k > need: need = k
            if need > have:
                self.nops[id(x)] = need; have = need
            adv = have + extra + x.states
            hist = [(p, d + adv) for p, d in hist if d + adv < 20]
            hist.append((x, 0))

    def finish(self):
        for _ in range(2):
            for t in self.traces: self._waits_on(t)
        for _ in range(2):
            for t in self.traces: self._nops_on(t)
        covered = set()
        for t in self.traces: covered.update(id(x) for x in t)
        out = []
        for x in self.layout:
            if id(x) not in covered and x.kind not in ("label",):
                raise ValueError("instruction on no trace: " + x.text)
            k = self.nops.get(id(x), 0)
            w = self.waits.get(id(x))
            if w and (w[0] is not None or w[1] is not None):
                s = "s_waitcnt"
                if w[0] is not None: s += f" vmcnt({w[0]})"
                if w[1] is not None: s += f" lgkmcnt({w[1]})"
                out.append("    " + s)
            while k > 0:
                q = min(k, 16); out.append(f"    s_nop {q - 1}"); k -= q
            if x.kind == "pseudo": continue
            out.append(x.text if x.kind == "label" else "    " + x.text)
        return "\n".join(out) + "\n"

    def stats(self, lst):
        w = sum(1 for x in lst if id(x) in self.waits and any(v is not None for v in self.waits[id(x)]))
        n = sum(self.nops.get(id(x), 0) for x in lst)
        return w, n


def kd(name, vgpr, agpr=0, sgpr=96):
    acc = ((vgpr + 3) // 4) * 4
    nfv = acc + agpr if agpr else vgpr
    return f""".amdhsa_kernel {name}
  .amdhsa_next_free_vgpr {nfv}
  .amdhsa_next_free_sgpr {sgpr}
  .amdhsa_accum_offset {acc}
  .amdhsa_group_segment_fixed_size 0
  .amdhsa_kernarg_size 80
  .amdhsa_user_sgpr_count 2
  .amdhsa_user_sgpr_kernarg_segment_ptr 1
  .amdhsa_system_sgpr_workgroup_id_x 1
.end_amdhsa_kernel
"""


def srd(d, ptr, nbytes, add=0):
    o = []
    if add == 0:
        o.append(I(f"s_mov_b32 s{d}, s{ptr}")); o.append(I(f"s_mov_b32 s{d+1}, s{ptr+1}"))
    elif add > 0:
        o.append(I(f"s_add_u32 s{d}, s{ptr}, {add}")); o.append(I(f"s_addc_u32 s{d+1}, s{ptr+1}, 0"))
    else:
        o.append(I(f"s_sub_u32 s{d}, s{ptr}, {-add}")); o.append(I(f"s_subb_u32 s{d+1}, s{ptr+1}, 0"))
    o.append(I(f"s_mov_b32 s{d+2}, {nbytes}")); o.append(I(f"s_mov_b32 s{d+3}, 0x20000"))
    return o


def weave(main, fill):
    out = []
    for k, x in enumerate(main):
        out.append(x)
        out.extend(fill.get(k, []))
    return out
```

```python
import sys
from asmlib import *
from k_ln import *
HEADER = open("parallel_sum__softmax_full_mha__swiglu_ffn__prompt.s.ref").read().split("; Override")[0] if False else ""
WS_STAMP = 48 << 20

def make_stamp(kidx, nst, wave_sgpr):
    def stamp(k):
        if k == "entry": return [I("s_memrealtime s[88:89]")]
        c = [I(f"s_memtime s[{80+2*k}:{81+2*k}]")]
        if k == 0: c += [I("s_memrealtime s[90:91]"), I("s_waitcnt lgkmcnt(0)")]
        if k == nst - 1:
            c += block(f"""
            s_memrealtime s[92:93]
            s_load_dwordx2 s[76:77], s[0:1], 72
            s_waitcnt lgkmcnt(0)
            s_add_u32 s76, s76, {WS_STAMP + kidx * 65536}
            s_addc_u32 s77, s77, 0
            s_mov_b32 s78, 65536
            s_mov_b32 s79, 0x20000
            s_lshl_b32 s94, s2, 2
            s_add_u32 s94, s94, s{wave_sgpr}
            s_lshl_b32 s94, s94, 6
            v_mov_b32 v0, s94
            """)
            for q in range(14): c.append(I(f"v_mov_b32 v{2+q}, s{80+q}"))
            c += block("""
            s_mov_b64 exec, 1
            buffer_store_dwordx4 v[2:5], v0, s[76:79], 0 offen
            buffer_store_dwordx4 v[6:9], v0, s[76:79], 0 offen offset:16
            buffer_store_dwordx4 v[10:13], v0, s[76:79], 0 offen offset:32
            buffer_store_dwordx2 v[14:15], v0, s[76:79], 0 offen offset:48
            """)
        return c
    return stamp

def assemble_file(kernels, path):
    head = ""
    for n, (t, d, g) in kernels:
        head += f"; @launch kernel={n} grid=({g['grid']},1,1) block=({g['block']},1,1) lds={g['lds']}\n"
    s = head + '.amdgcn_target "amdgcn-amd-amdhsa--gfx950"\n.text\n'
    seen = set()
    for n, (t, d, g) in kernels:
        if n in seen: continue
        seen.add(n)
        s += f".globl {n}\n.p2align 8\n.type {n},@function\n{n}:\n" + t
    s += '.section .rodata,"a"\n'
    seen = set()
    for n, (t, d, g) in kernels:
        if n in seen: continue
        seen.add(n)
        s += ".p2align 6\n" + d
    open(path, "w").write(s)
```

```python
from asmlib import *
from k_ln import WS_XN, WS_QKV, WS_HO, WS_END

V_KA, V_VA0, V_VA1, V_DK = 1, 2, 3, 4
V_Q, V_SEL, V_L, V_O, V_S, V_P, V_K, V_V = 8, 24, 28, 40, 72, 104, 120, 136
S_SRDK, S_SRDV, S_SRDW = 8, 12, 16
S_KOFF, S_M0, S_LOOP, S_W, S_QOFF, S_OOFF = 20, 21, 22, 23, 24, 25
SLOT = 16384


def kv_dma(slot):
    tag = f"KV{slot}"
    return [[I(f"s_add_u32 m0, s{S_M0}, {slot*SLOT}")],
            [I(f"buffer_load_dwordx4 v{V_DK}, s[{S_SRDK}:{S_SRDK+3}], s{S_KOFF} offen lds", tag)],
            [I(f"buffer_load_dwordx4 v{V_DK}, s[{S_SRDK}:{S_SRDK+3}], s{S_KOFF} offen offset:1024 lds", tag)],
            [I(f"s_add_u32 m0, s{S_M0}, {slot*SLOT+8192}")],
            [I(f"buffer_load_dwordx4 v{V_DK}, s[{S_SRDV}:{S_SRDV+3}], s{S_KOFF} offen lds", tag)],
            [I(f"buffer_load_dwordx4 v{V_DK}, s[{S_SRDV}:{S_SRDV+3}], s{S_KOFF} offen offset:1024 lds", tag)],
            [I(f"s_add_u32 s{S_KOFF}, s{S_KOFF}, 8192")]]


def k_read(T):
    T %= 16
    base = (T >> 2) * SLOT + (T & 3) * 2048
    d = V_K + 8 * (T & 1)
    return [I(f"ds_read_b128 v[{d+4*m}:{d+4*m+3}], v{V_KA} offset:{base + m*512}") for m in range(2)]


def v_read(T):
    T %= 16
    base = (T >> 2) * SLOT + 8192 + (T & 3) * 2048
    d = V_V + 8 * (T & 1)
    return [I(f"ds_read_b64_tr_b16 v[{d+4*m+2*z}:{d+4*m+2*z+1}], v{V_VA0+z} offset:{base + m*1024}") for m in range(2) for z in range(2)]


def qk(u):
    T, qb = u >> 1, u & 1
    s = V_S + 16 * (u & 1); k = V_K + 8 * (T & 1); q = V_Q + 8 * qb
    return [I(f"v_mfma_f32_32x32x16_bf16 v[{s}:{s+15}], v[{k}:{k+3}], v[{q}:{q+3}], 0"),
            I(f"v_mfma_f32_32x32x16_bf16 v[{s}:{s+15}], v[{k+4}:{k+7}], v[{q+4}:{q+7}], v[{s}:{s+15}]")]


def pv(u):
    T, qb = u >> 1, u & 1
    o = V_O + 16 * qb; v = V_V + 8 * (T & 1); p = V_P + 8 * (u & 1); l = V_L + 4 * qb
    return ([I(f"v_mfma_f32_32x32x16_bf16 v[{o}:{o+15}], v[{v+4*m}:{v+4*m+3}], v[{p+4*m}:{p+4*m+3}], v[{o}:{o+15}]") for m in range(2)],
            [I(f"v_mfma_f32_16x16x32_bf16 v[{l}:{l+3}], v[{V_SEL}:{V_SEL+3}], v[{p+4*m}:{p+4*m+3}], v[{l}:{l+3}]") for m in range(2)])


def slot_code(u, do_qk=True, do_sm=True, do_pv=True):
    s = V_S + 16 * (u & 1); p = V_P + 8 * (u & 1)
    E = [I(f"v_exp_f32 v{s+r}, v{s+r}") for r in range(16)] if do_sm else [None] * 16
    C = [I(f"v_cvt_pk_bf16_f32 v{p+j}, v{s+2*j}, v{s+2*j+1}") for j in range(8)] if do_sm else [None] * 8
    A = qk(u + 1) if do_qk else [None, None]
    PV, SM = pv(u - 1) if do_pv else ([None, None], [None, None])
    seq = [A[0], E[0], E[1], E[2],
           A[1], E[3], C[0], E[4], C[1],
           PV[0], E[5], E[6], E[7],
           SM[0], C[2], C[3],
           PV[1], E[8], E[9], E[10],
           SM[1], E[11], C[4], E[12], C[5], E[13], E[14], E[15], C[6], C[7]]
    return [x for x in seq if x is not None]


def shadow_fill(seq, fillers, start=0):
    pos = [k for k, x in enumerate(seq) if x.kind in ("trans", "mfma")]
    fill = {}
    for n, f in enumerate(fillers):
        fill.setdefault(pos[start + n], []).extend(f if isinstance(f, list) else [f])
    return weave(seq, fill)


def chunk(c):
    out = []
    for t in range(8):
        u = 8 * c + t
        seq = slot_code(u)
        T = u >> 1
        f = []
        if t == 6:
            f = [[WAITLG(), WAITVM(f"KV{(c+1)%4}"), I("s_barrier")]] + [[x] for x in k_read(T + 1)] + kv_dma(c)
            out += shadow_fill(seq, f, 2)
            continue
        if t % 2 == 0: f = [[x] for x in k_read(T + 1)]
        else: f = [[x] for x in v_read(T + 1)] if t != 7 else [[x] for x in v_read(T + 1)]
        out += shadow_fill(seq, f, 2)
    return out


def gen_attn(name, stamp=None):
    P = Program()
    pre = block(f"""
    s_cmp_ge_u32 s2, 256
    s_cbranch_scc1 L_{name}_end
    s_load_dwordx2 s[6:7], s[0:1], 72       ; ws
    v_lshrrev_b32 v5, 6, v0
    v_and_b32 v0, 63, v0
    v_readfirstlane_b32 s{S_W}, v5
    s_and_b32 s30, s2, 7
    s_lshl_b32 s30, s30, 2
    s_bfe_u32 s31, s2, 0x20003
    s_add_u32 s30, s30, s31                 ; head
    s_lshr_b32 s31, s2, 5                   ; q tile
    s_lshl_b32 s32, s30, 17                 ; head*128KB
    s_lshl_b32 s33, s31, 14
    s_lshl_b32 s34, s{S_W}, 12
    s_add_u32 s33, s33, s34
    s_add_u32 s{S_QOFF}, s32, s33
    s_add_u32 s{S_QOFF}, s{S_QOFF}, {WS_QKV}
    s_lshl_b32 s33, s31, 1
    s_lshr_b32 s34, s{S_W}, 1
    s_add_u32 s33, s33, s34                 ; mt128
    s_mul_i32 s33, s33, 144
    s_add_u32 s33, s33, s30
    s_add_u32 s33, s33, 112
    s_lshl_b32 s33, s33, 13
    s_and_b32 s34, s{S_W}, 1
    s_lshl_b32 s34, s34, 12
    s_add_u32 s33, s33, s34
    s_add_u32 s{S_OOFF}, s33, {WS_HO}
    s_mov_b32 s{S_KOFF}, 0
    s_lshl_b32 s{S_M0}, s{S_W}, 11
    v_lshlrev_b32 v{V_DK}, 4, v0
    v_add_u32 v{V_DK}, s{S_M0}, v{V_DK}
    v_bfe_u32 v5, v0, 4, 1
    v_lshrrev_b32 v6, 5, v0                 ; hh
    v_and_b32 v7, 15, v0
    v_lshlrev_b32 v{V_KA}, 10, v5
    v_lshl_add_u32 v{V_KA}, v6, 8, v{V_KA}
    v_lshl_add_u32 v{V_KA}, v7, 4, v{V_KA}
    s_waitcnt lgkmcnt(0)
    s_add_u32 s32, s32, {WS_QKV + (4 << 20)}
    s_add_u32 s{S_SRDK}, s6, s32
    s_addc_u32 s{S_SRDK+1}, s7, 0
    s_mov_b32 s{S_SRDK+2}, 131072
    s_mov_b32 s{S_SRDK+3}, 0x20000
    s_add_u32 s{S_SRDV}, s{S_SRDK}, {4 << 20}
    s_addc_u32 s{S_SRDV+1}, s{S_SRDK+1}, 0
    s_mov_b32 s{S_SRDV+2}, 131072
    s_mov_b32 s{S_SRDV+3}, 0x20000
    """)
    pre += srd(S_SRDW, 6, WS_END)
    for g in kv_dma(0): pre += g
    for qb in range(2):
        for m in range(2):
            d = V_Q + 8 * qb + 4 * m
            pre.append(I(f"buffer_load_dwordx4 v[{d}:{d+3}], v{V_KA}, s[{S_SRDW}:{S_SRDW+3}], s{S_QOFF} offen offset:{qb*2048+m*512}"))
    for c in range(1, 4):
        for g in kv_dma(c): pre += g
    pre += block(f"""
    v_and_b32 v7, 3, v0                     ; c
    v_xor_b32 v6, v6, v7                    ; hh ^ c
    v_lshlrev_b32 v{V_VA0}, 8, v7           ; c*256
    v_lshl_add_u32 v{V_VA0}, v6, 6, v{V_VA0}   ; + (hh^c)*64
    v_bfe_u32 v7, v0, 2, 2                  ; r
    v_lshl_add_u32 v{V_VA0}, v7, 4, v{V_VA0}
    v_lshl_add_u32 v{V_VA0}, v5, 3, v{V_VA0}   ; + dhalf*8
    v_xor_b32 v{V_VA1}, 128, v{V_VA0}
    v_bfe_u32 v6, v0, 2, 1
    v_cmp_eq_u32 vcc, v5, v6
    v_mov_b32 v7, 0x3f803f80
    v_cndmask_b32 v{V_SEL}, 0, v7, vcc
    v_mov_b32 v{V_SEL+1}, v{V_SEL}
    v_mov_b32 v{V_SEL+2}, v{V_SEL}
    v_mov_b32 v{V_SEL+3}, v{V_SEL}
    s_mov_b32 s{S_LOOP}, 4
    """)
    for r in list(range(V_L, V_L + 8)) + list(range(V_O, V_O + 32)) + list(range(V_P + 8, V_P + 16)) + list(range(V_V + 8, V_V + 16)):
        pre.append(I(f"v_mov_b32 v{r}, 0"))
    pre += [WAITVM("KV0"), I("s_barrier")]
    if stamp: pre += stamp(0)
    pre += k_read(0) + v_read(0) + qk(0)
    body = []
    for c in range(4): body += chunk(c)
    body += block(f"""
    s_sub_u32 s{S_LOOP}, s{S_LOOP}, 1
    s_cmp_lg_u32 s{S_LOOP}, 0
    s_cbranch_scc1 L_{name}_loop
    """)
    lab = I(f"L_{name}_loop:")
    PV, SM = pv(31)
    post = [PV[0], SM[0], PV[1], SM[1]]
    if stamp: post += stamp(1)
    for qb in range(2):
        o = V_O + 16 * qb; l = V_L + 4 * qb; t = V_S + 8 * qb
        post.append(I(f"v_rcp_f32 v{l}, v{l}"))
        for r in range(16): post.append(I(f"v_mul_f32 v{o+r}, v{o+r}, v{l}"))
        for g in range(2):
            for n, a in enumerate((g, g + 2)):
                for h in range(2):
                    post.append(I(f"v_cvt_pk_bf16_f32 v{t+4*g+2*n+h}, v{o+4*a+2*h}, v{o+4*a+2*h+1}"))
            post.append(I(f"buffer_store_dwordx4 v[{t+4*g}:{t+4*g+3}], v{V_KA}, s[{S_SRDW}:{S_SRDW+3}], s{S_OOFF} offen offset:{qb*2048+g*512}"))
    end = (stamp(2) if stamp else []) + [I(f"L_{name}_end:"), I("s_endpgm")]
    P.add(pre, lab, body, post, end)
    P.trace(pre, body, body, post, end)
    txt = P.finish()
    print(name, "loop waits/nops", P.stats(body), "instrs", len(body))
    return txt, kd(name, 152, 0, 96), dict(grid=256, block=256, lds=4 * SLOT)
```

```python
from asmlib import *
from k_ln import WS_XN, WS_QKV, WS_HO, WS_END

V_A0, V_A1 = 1, 2
V_DW = [3, 4, 5, 6]
V_WR = [8, 9, 10, 11]
V_ACC = 16
A_A, A_W = 0, 128
S_SRDA, S_SRDW, S_SRDX, S_SRDO = 8, 12, 16, 20
S_AOFF, S_WOFF, S_M0, S_LOOP, S_W, S_CNT, S_WO = 24, 25, 26, 27, 28, 29, 30
S_WO0, S_XOFF = 32, 33


def loads(slot):
    g = []
    tag = f"W{slot}"
    g.append([I(f"s_add_u32 m0, s{S_M0}, {slot*4096}"),
              I(f"s_cmp_eq_u32 s{S_CNT}, 28")])
    g.append([I(f"s_cselect_b32 s{S_SRDW}, s{S_WO}, s{S_SRDW}"),
              I(f"s_cselect_b32 s{S_SRDW+1}, s{S_WO+1}, s{S_SRDW+1}")])
    g.append([I(f"s_cselect_b32 s{S_SRDW+2}, 2097152, s{S_SRDW+2}"),
              I(f"s_cselect_b32 s{S_WOFF}, s{S_WO0}, s{S_WOFF}")])
    for c in range(4):
        l = [I(f"buffer_load_dwordx4 v{V_DW[c]}, s[{S_SRDW}:{S_SRDW+3}], s{S_WOFF} offen offset:{c*1024} lds", tag)]
        if c == 0: l.append(I(f"s_add_u32 s{S_CNT}, s{S_CNT}, 1"))
        if c == 3: l.append(I(f"s_add_u32 s{S_WOFF}, s{S_WOFF}, {4*65536}"))
        g.append(l)
    for i in range(8):
        d = A_A + 32 * slot + 4 * i
        l = [I(f"buffer_load_dwordx4 a[{d}:{d+3}], v{V_A0 + (i >> 2)}, s[{S_SRDA}:{S_SRDA+3}], s{S_AOFF} offen offset:{(i&3)*1024}")]
        if i == 7: l.append(I(f"s_add_u32 s{S_AOFF}, s{S_AOFF}, {4*8192}"))
        g.append(l)
    return g


def w_reads(s):
    o = []
    for nb in range(4):
        d = A_W + 16 * (s % 2) + 4 * nb
        for q in range(2):
            o.append(I(f"ds_read_b64_tr_b16 a[{d+2*q}:{d+2*q+1}], v{V_WR[nb]} offset:{(s%4)*4096 + q*2048}"))
    return o


def mfmas(s):
    main = []
    for nb in range(4):
        order = range(8) if nb % 2 == 0 else range(7, -1, -1)
        wb = A_W + 16 * (s % 2) + 4 * nb
        for i in order:
            r = V_ACC + 4 * (i * 4 + nb); ab = A_A + 32 * (s % 4) + 4 * i
            main.append(I(f"v_mfma_f32_16x16x32_bf16 v[{r}:{r+3}], a[{wb}:{wb+3}], a[{ab}:{ab+3}], v[{r}:{r+3}]"))
    return main


def step(s):
    main = mfmas(s)
    fill = {}
    def put(g, l): fill.setdefault(g, []).extend(l if isinstance(l, list) else [l])
    for k, g in enumerate(loads((s + 3) % 4)): put(2 * k, g)
    put(9, WAITVM(f"W{(s+1)%4}"))
    for k, x in enumerate(w_reads(s + 1)): put(9 + 2 * k, x)
    return weave(main, fill)


def gen_final(name, stamp=None):
    P = Program()
    pre = (stamp("entry") if stamp else []) + block(f"""
    s_cmp_ge_u32 s2, 256
    s_cbranch_scc1 L_{name}_end
    s_load_dwordx2 s[4:5], s[0:1], 0        ; x
    s_load_dwordx2 s[{S_WO}:{S_WO+1}], s[0:1], 16   ; wo
    s_load_dwordx4 s[36:39], s[0:1], 48     ; w_down, out
    s_load_dwordx2 s[6:7], s[0:1], 72       ; ws
    v_lshrrev_b32 v12, 6, v0
    v_and_b32 v0, 63, v0
    v_readfirstlane_b32 s{S_W}, v12
    s_and_b32 s40, s2, 7
    s_lshr_b32 s41, s2, 3
    s_lshr_b32 s42, s40, 1
    s_lshl_b32 s42, s42, 2
    s_and_b32 s43, s41, 3
    s_add_u32 s42, s42, s43                 ; mt128
    s_and_b32 s43, s40, 1
    s_lshl_b32 s43, s43, 3
    s_lshr_b32 s44, s41, 2
    s_add_u32 s43, s43, s44                 ; nt
    s_lshl_b32 s{S_AOFF}, s{S_W}, 13
    s_lshl_b32 s{S_WOFF}, s{S_W}, 16
    s_mov_b32 s{S_WO0}, s{S_WOFF}
    s_lshl_b32 s{S_M0}, s{S_W}, 14
    s_mov_b32 s{S_CNT}, 0
    v_lshlrev_b32 v{V_A0}, 4, v0
    v_add_u32 v{V_A1}, 4096, v{V_A0}
    v_and_b32 v14, 7, v0                    ; pos
    v_bfe_u32 v15, v0, 4, 1
    v_lshlrev_b32 v15, 2, v15
    v_xor_b32 v14, v14, v15
    v_bfe_u32 v15, v0, 5, 1
    v_lshlrev_b32 v15, 1, v15
    v_xor_b32 v14, v14, v15
    v_lshlrev_b32 v14, 4, v14
    v_lshrrev_b32 v13, 3, v0
    v_lshl_add_u32 v14, v13, 11, v14
    s_lshl_b32 s44, s43, 7
    v_add_u32 v{V_DW[0]}, s44, v14
    v_add_u32 v{V_DW[1]}, {15360}, v{V_DW[0]}
    v_add_u32 v{V_DW[2]}, {2*15360}, v{V_DW[0]}
    v_add_u32 v{V_DW[3]}, {3*15360}, v{V_DW[0]}
    s_mul_i32 s45, s42, {144*8192}
    s_add_u32 s45, s45, {WS_HO}
    s_waitcnt lgkmcnt(0)
    s_add_u32 s{S_SRDA}, s6, s45
    s_addc_u32 s{S_SRDA+1}, s7, 0
    s_mov_b32 s{S_SRDA+2}, {144*8192}
    s_mov_b32 s{S_SRDA+3}, 0x20000
    """)
    pre += srd(S_SRDW, 36, 3584 * 2048) + srd(S_SRDX, 4, 4194304) + srd(S_SRDO, 38, 4194304)
    for st in range(3):
        for g in loads(st): pre += g
    pre += block(f"""
    v_bfe_u32 v13, v0, 2, 3                 ; rho
    v_lshlrev_b32 v14, 7, v13
    v_lshrrev_b32 v15, 5, v0
    v_lshl_add_u32 v14, v15, 10, v14        ; + hh*1024
    v_and_b32 v15, 3, v0
    v_lshl_add_u32 v14, v15, 3, v14
    v_add_u32 v14, s{S_M0}, v14
    v_bfe_u32 v15, v0, 3, 1
    v_lshlrev_b32 v15, 1, v15
    v_bfe_u32 v13, v0, 4, 1
    v_or_b32 v15, v15, v13
    v_lshl_add_u32 v{V_WR[0]}, v15, 5, v14
    v_xor_b32 v{V_WR[1]}, 32, v{V_WR[0]}
    v_xor_b32 v{V_WR[2]}, 64, v{V_WR[0]}
    v_xor_b32 v{V_WR[3]}, 96, v{V_WR[0]}
    s_mov_b32 s{S_LOOP}, 9
    s_lshl_b32 s45, s42, 18
    s_lshl_b32 s46, s{S_W}, 16
    s_add_u32 s45, s45, s46
    s_add_u32 s{S_XOFF}, s45, s44
    """)
    for r in range(V_ACC, V_ACC + 128): pre.append(I(f"v_mov_b32 v{r}, 0"))
    pre.append(WAITVM("W0"))
    if stamp: pre += stamp(0)
    pre += w_reads(0)
    body = []
    for s in range(4): body += step(s)
    body += block(f"""
    s_sub_u32 s{S_LOOP}, s{S_LOOP}, 1
    s_cmp_lg_u32 s{S_LOOP}, 0
    s_cbranch_scc1 L_{name}_loop
    """)
    lab = I(f"L_{name}_loop:")
    post = (stamp(1) if stamp else [])
    X = 144
    post += block(f"""
    v_lshrrev_b32 v1, 3, v0                 ; tt
    v_and_b32 v2, 7, v0                     ; z
    v_lshlrev_b32 v3, 11, v1
    v_lshl_add_u32 v3, v2, 4, v3
    s_waitcnt vmcnt(0) lgkmcnt(0)
    """)
    for g in range(4):
        post.append(I(f"s_add_u32 s40, s{S_XOFF}, {g*16384}"))
        post.append(I(f"buffer_load_dwordx4 v[{X+4*g}:{X+4*g+3}], v3, s[{S_SRDX}:{S_SRDX+3}], s40 offen"))
    post += block(f"""
    v_lshrrev_b32 v4, 4, v0                 ; G
    v_and_b32 v5, 15, v0                    ; t
    v_and_b32 v6, 2, v4
    v_xor_b32 v5, v5, v6                    ; t ^ 2(G>>1)
    v_lshlrev_b32 v5, 4, v5
    v_lshl_add_u32 v5, v4, 8, v5
    s_lshl_b32 s41, s{S_W}, 15
    v_add_u32 v8, s41, v5
    v_xor_b32 v9, 64, v8
    v_xor_b32 v10, 128, v8
    v_xor_b32 v11, 192, v8
    v_lshlrev_b32 v4, 1, v2
    v_xor_b32 v4, v4, v1                    ; tt ^ 2z
    v_lshlrev_b32 v4, 4, v4
    v_lshrrev_b32 v5, 1, v2
    v_lshl_add_u32 v4, v5, 10, v4
    v_and_b32 v5, 1, v2
    v_lshl_add_u32 v4, v5, 9, v4
    s_lshl_b32 s41, s{S_W}, 13
    v_add_u32 v4, s41, v4                   ; + (2w)*4096
    v_xor_b32 v5, 128, v4
    v_add_u32 v6, 65536, v4
    v_add_u32 v7, 65536, v5
    s_barrier
    """)
    for i in range(8):
        for nb in range(4):
            r = V_ACC + 4 * (i * 4 + nb)
            post.append(I(f"ds_write_b128 v{8+nb}, v[{r}:{r+3}] offset:{i*4096+nb*1024}"))
    post += [WAITLG(), I("s_barrier")]
    for g in range(4):
        ib, hf = g >> 1, g & 1
        b = 16 + 32 * g
        for sw in range(4):
            for e in range(2):
                post.append(I(f"ds_read_b128 v[{b+8*sw+4*e}:{b+8*sw+4*e+3}], v{4+hf+2*(sw>>1)} offset:{(sw&1)*32768+ib*4096+e*256}"))
    for g in range(4):
        b = 16 + 32 * g
        for r in range(0, 8, 2):
            post.append(I(f"v_pk_add_f32 v[{b+r}:{b+r+1}], v[{b+r}:{b+r+1}], v[{b+8+r}:{b+9+r}]"))
            post.append(I(f"v_pk_add_f32 v[{b+16+r}:{b+17+r}], v[{b+16+r}:{b+17+r}], v[{b+24+r}:{b+25+r}]"))
        for r in range(4):
            post.append(I(f"v_lshlrev_b32 v{b+8+2*r}, 16, v{X+4*g+r}"))
            post.append(I(f"v_and_b32 v{b+9+2*r}, 0xffff0000, v{X+4*g+r}"))
        for r in range(0, 8, 2):
            post.append(I(f"v_pk_add_f32 v[{b+r}:{b+r+1}], v[{b+r}:{b+r+1}], v[{b+16+r}:{b+17+r}]"))
        for r in range(0, 8, 2):
            post.append(I(f"v_pk_add_f32 v[{b+r}:{b+r+1}], v[{b+r}:{b+r+1}], v[{b+8+r}:{b+9+r}]"))
        for r in range(4):
            post.append(I(f"v_cvt_pk_bf16_f32 v{b+16+r}, v{b+2*r}, v{b+2*r+1}"))
        post.append(I(f"s_add_u32 s40, s{S_XOFF}, {g*16384}"))
        post.append(I(f"buffer_store_dwordx4 v[{b+16}:{b+19}], v3, s[{S_SRDO}:{S_SRDO+3}], s40 offen"))
    end = (stamp(2) if stamp else []) + [I(f"L_{name}_end:"), I("s_endpgm")]
    P.add(pre, lab, body, post, end)
    P.trace(pre, body, body, post, end)
    txt = P.finish()
    print(name, "loop waits/nops", P.stats(body), "instrs", len(body))
    return txt, kd(name, 160, 160, 96), dict(grid=256, block=256, lds=131072)
```

```python
from asmlib import *
from k_ln import WS_XN, WS_QKV, WS_HO, WS_END
import struct, math

STAGE = 36864
QSCALE = (32 ** -0.5) * math.log2(math.e)


def f2u(x):
    return struct.unpack("<I", struct.pack("<f", x))[0]


V_XA, V_XB = 1, 2
V_W = [[3, 4], [5, 6]]
V_DX = 7
V_DW = [8, 9, 10, 11, 12]
V_T0, V_T1, V_T2 = 13, 14, 15
A_X = 80
A_W = 144


def acc(i, j):
    if j < 2: idx = i * 2 + j; return ("a", 4 * idx)
    if i == 7 and j >= 6: return ("a", 64 + 4 * (j - 6))
    k = i * 8 + (j - 2)
    return ("v", 16 + 4 * k)


S_SRDX = 8
S_SRDW = [12, 16, 20, 24, 28]
S_SRDO = 32
S_XOFF, S_W0, S_W12, S_W34, S_W12STEP = 36, 37, 38, 39, 40
S_M0X, S_M0W = 41, 42
S_LOOP = 43
S_TYPE, S_C0, S_C1, S_C2, S_G12, S_G34 = 44, 45, 46, 47, 48, 49
S_WM, S_WN, S_W, S_MT = 50, 51, 52, 53


def dma_group(stage):
    g = []
    tag = f"D{stage}"
    g.append([I(f"s_add_u32 m0, s{S_M0W}, {stage*STAGE}"),
              I(f"buffer_load_dwordx4 v{V_DW[0]}, s[{S_SRDW[0]}:{S_SRDW[0]+3}], s{S_W0} offen lds", tag)])
    g.append([I(f"buffer_load_dwordx4 v{V_DW[1]}, s[{S_SRDW[1]}:{S_SRDW[1]+3}], s{S_W12} offen offset:1024 lds", tag),
              I(f"s_add_u32 s{S_W0}, s{S_W0}, {32*6144}")])
    g.append([I(f"buffer_load_dwordx4 v{V_DW[2]}, s[{S_SRDW[2]}:{S_SRDW[2]+3}], s{S_W12} offen offset:2048 lds", tag),
              I(f"s_add_u32 s{S_W12}, s{S_W12}, s{S_W12STEP}")])
    g.append([I(f"buffer_load_dwordx4 v{V_DW[3]}, s[{S_SRDW[3]}:{S_SRDW[3]+3}], s{S_W34} offen offset:3072 lds", tag),
              I(f"s_add_u32 m0, s{S_M0W}, {stage*STAGE+4096}")])
    g.append([I(f"buffer_load_dwordx4 v{V_DW[4]}, s[{S_SRDW[4]}:{S_SRDW[4]+3}], s{S_W34} offen lds", tag),
              I(f"s_add_u32 m0, s{S_M0X}, {stage*STAGE}")])
    for q in range(4):
        l = [I(f"buffer_load_dwordx4 v{V_DX}, s[{S_SRDX}:{S_SRDX+3}], s{S_XOFF} offen offset:{1024*q} lds", tag)]
        if q == 0: l.append(I(f"s_add_u32 s{S_W34}, s{S_W34}, {32*7168}"))
        if q == 3: l.append(I(f"s_add_u32 s{S_XOFF}, s{S_XOFF}, 16384"))
        g.append(l)
    return g


def w_read(stage, j, gblk):
    slot, nb = j >> 1, j & 1
    d = A_W + 4 * (gblk % 4)
    va = V_W[nb][stage >> 1]
    return [I(f"ds_read_b64_tr_b16 a[{d+2*q}:{d+2*q+1}], v{va} offset:{(stage&1)*STAGE + q*5120 + slot*1024}") for q in range(2)]


def x_read(stage, i, xset):
    d = A_X + 32 * xset + 4 * i
    va = V_XA if stage < 2 else V_XB
    return I(f"ds_read_b128 a[{d}:{d+3}], v{va} offset:{(stage&1)*STAGE + i*1024}")


def step(s, cfg):
    st = s % 4; nx = (s + 1) % 4
    main = []
    for j in range(10):
        order = range(8) if j % 2 == 0 else range(7, -1, -1)
        wb = A_W + 4 * ((10 * s + j) % 4)
        for i in order:
            f, r = acc(i, j)
            xb = A_X + 32 * (s % 2) + 4 * i
            main.append(I(f"v_mfma_f32_16x16x32_bf16 {f}[{r}:{r+3}], a[{wb}:{wb+3}], a[{xb}:{xb+3}], {f}[{r}:{r+3}]"))
    fill = {}
    def put(g, l): fill.setdefault(g, []).extend(l if isinstance(l, list) else [l])
    for j in range(7):
        rd = w_read(st, j + 3, 10 * s + j + 3)
        put(8 * j, rd[0]); put(8 * j + 1, rd[1])
    for k, g in enumerate(dma_group((s + 3) % 4)):
        put(cfg["dma0"] + cfg["dmastep"] * k, g)
    bar = cfg["bar"]
    put(bar, [WAITLG(), WAITVM(f"D{nx}"), I("s_barrier")])
    rd = w_read(nx, 0, 10 * s + 10); put(bar + 1, rd[0]); put(bar + 2, rd[1])
    rd = w_read(nx, 1, 10 * s + 11); put(64, rd[0]); put(65, rd[1])
    rd = w_read(nx, 2, 10 * s + 12); put(72, rd[0]); put(73, rd[1])
    gaps = [62, 63, 66, 67, 68, 69, 70, 74]
    for i in range(8): put(gaps[i], x_read(nx, i, (s + 1) % 2))
    return weave(main, fill)


def to_vgpr(f, r, tmp, code):
    if f == "v": return r
    for q in range(4): code.append(I(f"v_accvgpr_read_b32 v{tmp+q}, a{r+q}"))
    return tmp


def epi_qkv(slot, s_off, s_scale, v_addr, T):
    c = []
    for i in range(8):
        t = T[i % 2]
        r = []
        for nb in range(2):
            f, rr = acc(i, 2 * slot + nb)
            r.append(to_vgpr(f, rr, t + 4 * nb, c))
        for nb in range(2):
            for h in range(2):
                c.append(I(f"v_pk_mul_f32 v[{r[nb]+2*h}:{r[nb]+2*h+1}], v[{r[nb]+2*h}:{r[nb]+2*h+1}], s[{s_scale}:{s_scale+1}]"))
        for nb in range(2):
            for h in range(2):
                c.append(I(f"v_cvt_pk_bf16_f32 v{t+8+2*nb+h}, v{r[nb]+2*h}, v{r[nb]+2*h+1}"))
        if i == 4: c.append(I(f"s_add_u32 s{s_off}, s{s_off}, 4096"))
        c.append(I(f"buffer_store_dwordx4 v[{t+8}:{t+11}], v{v_addr}, s[{S_SRDO}:{S_SRDO+3}], s{s_off} offen offset:{(i%4)*1024}"))
    return c


def epi_pair(sg, su, s_off, s_nl2e, v_addr, T):
    c = []
    for i in range(8):
        t = T[i % 2]
        g = []; u = []
        for nb in range(2):
            f, rr = acc(i, 2 * sg + nb); g.append(to_vgpr(f, rr, t + 4 * nb, c))
            f, rr = acc(i, 2 * su + nb); u.append(to_vgpr(f, rr, t + 8 + 4 * nb, c))
        e = t + 16
        for nb in range(2):
            for h in range(2):
                c.append(I(f"v_pk_mul_f32 v[{e+4*nb+2*h}:{e+4*nb+2*h+1}], v[{g[nb]+2*h}:{g[nb]+2*h+1}], s[{s_nl2e}:{s_nl2e+1}]"))
        for q in range(8): c.append(I(f"v_exp_f32 v{e+q}, v{e+q}"))
        for nb in range(2):
            for h in range(2):
                c.append(I(f"v_pk_mul_f32 v[{u[nb]+2*h}:{u[nb]+2*h+1}], v[{g[nb]+2*h}:{g[nb]+2*h+1}], v[{u[nb]+2*h}:{u[nb]+2*h+1}]"))
        for q in range(4): c.append(I(f"v_pk_add_f32 v[{e+2*q}:{e+2*q+1}], v[{e+2*q}:{e+2*q+1}], 1.0 op_sel_hi:[1,0]"))
        for q in range(8): c.append(I(f"v_rcp_f32 v{e+q}, v{e+q}"))
        for nb in range(2):
            for h in range(2):
                c.append(I(f"v_pk_mul_f32 v[{u[nb]+2*h}:{u[nb]+2*h+1}], v[{u[nb]+2*h}:{u[nb]+2*h+1}], v[{e+4*nb+2*h}:{e+4*nb+2*h+1}]"))
        for nb in range(2):
            for h in range(2):
                c.append(I(f"v_cvt_pk_bf16_f32 v{t+24+2*nb+h}, v{u[nb]+2*h}, v{u[nb]+2*h+1}"))
        if i == 4: c.append(I(f"s_add_u32 s{s_off}, s{s_off}, 4096"))
        c.append(I(f"buffer_store_dwordx4 v[{t+24}:{t+27}], v{v_addr}, s[{S_SRDO}:{S_SRDO+3}], s{s_off} offen offset:{(i%4)*1024}"))
    return c


def gen_gemm1(name, cfg=None, stamp=None):
    cfg = dict(dict(dma0=3, dmastep=4, bar=58), **(cfg or {}))
    P = Program()
    pre = block(f"""
    s_cmp_ge_u32 s2, 256
    s_cbranch_scc1 L_{name}_end
    s_load_dwordx2 s[4:5], s[0:1], 8        ; wqkv
    s_load_dwordx4 s[56:59], s[0:1], 32
    s_load_dwordx2 s[6:7], s[0:1], 72       ; ws
    v_lshrrev_b32 v13, 6, v0
    v_and_b32 v0, 63, v0                    ; lane
    v_readfirstlane_b32 s{S_W}, v13         ; wave
    s_and_b32 s60, s2, 7                    ; xcd
    s_lshr_b32 s61, s2, 3
    s_and_b32 s{S_MT}, s61, 7               ; mt
    s_lshr_b32 s61, s61, 3
    s_lshr_b32 s{S_WM}, s{S_W}, 1
    s_and_b32 s{S_WN}, s{S_W}, 1
    s_mul_i32 s62, s60, 3
    s_add_u32 s63, s62, s61                 ; a
    s_add_u32 s64, s62, 24                  ; 24+3j
    s_lshl_b32 s65, s63, 1                  ; 2a
    s_add_u32 s66, s65, 1                   ; 2a+1
    s_add_u32 s67, s60, 48                  ; 48+j
    s_cmp_eq_u32 s61, 3
    s_cselect_b32 s{S_TYPE}, 1, 0
    s_cselect_b32 s{S_C0}, s64, s63
    s_cselect_b32 s{S_G34}, s67, s66
    s_add_u32 s68, s64, 1
    s_add_u32 s69, s64, 2
    s_mov_b32 s70, 6144
    s_cmp_eq_u32 s61, 3
    s_cselect_b32 s{S_C1}, s68, s65
    s_cselect_b32 s{S_C2}, s69, s65
    s_cselect_b32 s70, s70, 7168
    s_lshl_b32 s{S_W12STEP}, s70, 5
    s_mov_b32 s{S_XOFF}, 0
    s_mov_b32 s{S_W0}, 0
    s_mov_b32 s{S_W12}, 0
    s_mov_b32 s{S_W34}, 0
    s_lshl_b32 s{S_M0X}, s{S_W}, 12         ; w*4096
    s_mul_i32 s{S_M0W}, s{S_W}, 5120
    s_add_u32 s{S_M0W}, s{S_M0W}, 16384
    v_lshrrev_b32 v13, 3, v0                ; rho
    v_and_b32 v14, 7, v0                    ; pos
    v_bfe_u32 v15, v0, 4, 1                 ; bit1(rho)
    v_lshlrev_b32 v15, 2, v15               ; 2*(2*bit1)
    v_xor_b32 v14, v14, v15
    v_bfe_u32 v15, v0, 5, 1                 ; bit2(rho)
    v_lshlrev_b32 v15, 1, v15
    v_xor_b32 v14, v14, v15
    v_lshlrev_b32 v14, 4, v14               ; *16 bytes
    v_and_b32 v15, 3, v13
    v_lshrrev_b32 v13, 2, v13
    v_lshl_add_u32 v13, v13, 3, v15
    s_lshl_b32 s71, s{S_WM}, 4
    s_lshl_b32 s72, s{S_WN}, 2
    s_add_u32 s71, s71, s72                 ; 16*(w>>1) + 4*(w&1)
    v_add_u32 v13, s71, v13                 ; k row
    s_mov_b32 s72, 6144
    v_mul_lo_u32 v8, v13, s72
    v_mul_lo_u32 v9, v13, s70
    s_mov_b32 s72, 7168
    v_mul_lo_u32 v11, v13, s72
    v_add_u32 v8, v8, v14
    v_add_u32 v9, v9, v14
    v_add_u32 v11, v11, v14
    s_lshl_b32 s72, s{S_C0}, 7
    s_add_u32 s72, s72, 4096
    v_add_u32 v8, s72, v8
    s_lshl_b32 s72, s{S_C2}, 7
    s_add_u32 s72, s72, 2048
    v_add_u32 v10, s72, v9
    s_lshl_b32 s72, s{S_C1}, 7
    s_add_u32 s72, s72, 3072
    v_add_u32 v9, s72, v9
    s_lshl_b32 s72, s{S_G34}, 7
    s_add_u32 s73, s72, 4096
    v_add_u32 v12, s73, v11
    s_add_u32 s73, s72, 1024
    v_add_u32 v11, s73, v11
    v_lshlrev_b32 v{V_DX}, 4, v0
    s_lshl_b32 s72, s{S_W}, 12
    v_add_u32 v{V_DX}, s72, v{V_DX}         ; lane*16 + w*4096
    s_waitcnt lgkmcnt(0)
    """)
    NQ, NG = 1024 * 6144 + 4096, 1024 * 7168 + 4096
    pre += srd(S_SRDW[0], 4, NQ, -4096) + srd(S_SRDW[3], 56, NG, -4096) + srd(S_SRDW[4], 58, NG, -4096)
    pre += block(f"""
    s_cmp_eq_u32 s{S_TYPE}, 1
    s_cselect_b32 s{S_SRDW[1]}, s{S_SRDW[0]}, s{S_SRDW[3]}
    s_cselect_b32 s{S_SRDW[1]+1}, s{S_SRDW[0]+1}, s{S_SRDW[3]+1}
    s_cselect_b32 s{S_SRDW[1]+2}, s{S_SRDW[0]+2}, s{S_SRDW[3]+2}
    s_mov_b32 s{S_SRDW[1]+3}, 0x20000
    s_cselect_b32 s{S_SRDW[2]}, s{S_SRDW[0]}, s{S_SRDW[4]}
    s_cselect_b32 s{S_SRDW[2]+1}, s{S_SRDW[0]+1}, s{S_SRDW[4]+1}
    s_cselect_b32 s{S_SRDW[2]+2}, s{S_SRDW[0]+2}, s{S_SRDW[3]+2}
    s_mov_b32 s{S_SRDW[2]+3}, 0x20000
    s_lshl_b32 s72, s{S_MT}, 19
    s_add_u32 s{S_SRDX}, s6, s72
    s_addc_u32 s{S_SRDX+1}, s7, 0
    s_mov_b32 s{S_SRDX+2}, 524288
    s_mov_b32 s{S_SRDX+3}, 0x20000
    """)
    assert WS_XN == 0
    pre += srd(S_SRDO, 6, WS_END)
    for st in range(3):
        for g in dma_group(st): pre += g
    pre += block(f"""
    v_lshlrev_b32 v{V_XA}, 4, v0
    s_lshl_b32 s72, s{S_WM}, 13
    v_add_u32 v{V_XA}, s72, v{V_XA}
    v_add_u32 v{V_XB}, {2*STAGE}, v{V_XA}
    v_bfe_u32 v13, v0, 2, 3                 ; rho = 4g + r
    v_lshlrev_b32 v14, 7, v13               ; rho*128
    v_lshrrev_b32 v15, 5, v0                ; hh
    v_mul_u32_u24 v15, 10240, v15
    v_add_u32 v14, v14, v15
    v_and_b32 v15, 3, v0
    v_lshl_add_u32 v14, v15, 3, v14         ; + cc*8
    v_add_u32 v14, 16384, v14
    v_bfe_u32 v15, v0, 3, 1                 ; bit1(rho)
    v_lshlrev_b32 v15, 1, v15
    v_bfe_u32 v13, v0, 4, 1                 ; bit2(rho)
    v_or_b32 v15, v15, v13                  ; t
    s_lshl_b32 s72, s{S_WN}, 1
    v_xor_b32 v15, s72, v15                 ; (2wn) ^ t
    v_lshl_add_u32 v{V_W[0][0]}, v15, 5, v14
    v_xor_b32 v{V_W[1][0]}, 32, v{V_W[0][0]}
    v_add_u32 v{V_W[0][1]}, {2*STAGE}, v{V_W[0][0]}
    v_add_u32 v{V_W[1][1]}, {2*STAGE}, v{V_W[1][0]}
    """)
    for r in range(16, 256): pre.append(I(f"v_mov_b32 v{r}, 0"))
    for r in range(80): pre.append(I(f"v_accvgpr_write_b32 a{r}, 0"))
    pre += [I(f"s_mov_b32 s{S_LOOP}, 8"), WAITVM("D0"), I("s_barrier")]
    if stamp: pre += stamp(0)
    for j in range(3): pre += w_read(0, j, j)
    for i in range(8): pre.append(x_read(0, i, 0))
    body = []
    for s in range(4): body += step(s, cfg)
    body += block(f"""
    s_sub_u32 s{S_LOOP}, s{S_LOOP}, 1
    s_cmp_lg_u32 s{S_LOOP}, 0
    s_cbranch_scc1 L_{name}_loop
    """)
    lab = I(f"L_{name}_loop:")
    S_SC, S_OFF, S_NL = 60, 62, 64
    def qkv_setup(sc):
        return block(f"""
    s_lshl_b32 s66, s{sc}, 1
    s_add_u32 s66, s66, s{S_WN}
    s_lshl_b32 s66, s66, 17
    s_add_u32 s{S_OFF}, s66, s67
    s_cmp_lt_u32 s{sc}, 16
    s_cselect_b32 s{S_SC}, {f2u(QSCALE)}, 1.0
    s_mov_b32 s{S_SC+1}, s{S_SC}
    s_cmp_ge_u32 s{sc}, 32
    s_cselect_b32 s66, -1, 0
    v_and_b32 v3, s66, v2
    v_xor_b32 v3, v3, v1
    """)
    def pair_setup(sc):
        return block(f"""
    s_lshl_b32 s66, s{sc}, 1
    s_add_u32 s66, s66, s{S_WN}
    s_lshl_b32 s66, s66, 13
    s_add_u32 s{S_OFF}, s66, s68
    """)
    e0 = (stamp(1) if stamp else []) + block(f"""
    s_waitcnt lgkmcnt(0)
    v_lshlrev_b32 v1, 4, v0                 ; lane*16
    v_lshrrev_b32 v2, 4, v0
    v_lshlrev_b32 v2, 6, v2                 ; G*64 : v swizzle mask
    s_lshl_b32 s67, s{S_MT}, 4
    s_lshl_b32 s66, s{S_WM}, 3
    s_add_u32 s67, s67, s66
    s_lshl_b32 s67, s67, 10
    s_add_u32 s67, s67, {WS_QKV}            ; qkv base + tb0*1024
    s_lshl_b32 s68, s{S_MT}, 1
    s_add_u32 s68, s68, s{S_WM}
    s_mul_i32 s68, s68, {144*8192}
    s_add_u32 s68, s68, {WS_HO}
    s_mov_b32 s{S_NL}, {f2u(-math.log2(math.e))}
    s_mov_b32 s{S_NL+1}, s{S_NL}
    """)
    e0 += qkv_setup(S_C0) + epi_qkv(0, S_OFF, S_SC, 3, [4, 4])
    e0 += block(f"""
    s_cmp_eq_u32 s{S_TYPE}, 1
    s_cbranch_scc1 L_{name}_B
    """)
    eA = pair_setup(S_C1) + epi_pair(1, 2, S_OFF, S_NL, 1, [4 - 16, 4 - 16]) + [I(f"s_branch L_{name}_C")]
    labB = I(f"L_{name}_B:")
    eB = qkv_setup(S_C1) + epi_qkv(1, S_OFF, S_SC, 3, [4, 4]) + qkv_setup(S_C2) + epi_qkv(2, S_OFF, S_SC, 3, [4, 4])
    labC = I(f"L_{name}_C:")
    eC = pair_setup(S_G34) + epi_pair_last(S_OFF, S_NL, 1)
    end = (stamp(2) if stamp else []) + [I(f"L_{name}_end:"), I("s_endpgm")]
    P.add(pre, lab, body, e0, eA, labB, eB, labC, eC, end)
    P.trace(pre, body, body, e0, eA, eC, end)
    P.trace(pre, body, body, e0, eB, eC, end)
    txt = P.finish()
    print(name, "loop waits/nops", P.stats(body), "instrs", len(body))
    return txt, kd(name, 256, 160, 96), dict(grid=256, block=256, lds=4 * STAGE)


def epi_pair_last(s_off, s_nl2e, v_addr):
    c = []
    for i in range(8):
        e = 16 + 32 * (i % 2)
        cp = 16 + 32 * 2
        g = []; u = []
        for nb in range(2):
            f, rr = acc(i, 6 + nb); g.append(to_vgpr(f, rr, cp + 4 * nb, c))
            f, rr = acc(i, 8 + nb); u.append(to_vgpr(f, rr, cp + 8 + 4 * nb, c))
        for nb in range(2):
            for h in range(2):
                c.append(I(f"v_pk_mul_f32 v[{e+4*nb+2*h}:{e+4*nb+2*h+1}], v[{g[nb]+2*h}:{g[nb]+2*h+1}], s[{s_nl2e}:{s_nl2e+1}]"))
        for q in range(8): c.append(I(f"v_exp_f32 v{e+q}, v{e+q}"))
        for nb in range(2):
            for h in range(2):
                c.append(I(f"v_pk_mul_f32 v[{u[nb]+2*h}:{u[nb]+2*h+1}], v[{g[nb]+2*h}:{g[nb]+2*h+1}], v[{u[nb]+2*h}:{u[nb]+2*h+1}]"))
        for q in range(4): c.append(I(f"v_pk_add_f32 v[{e+2*q}:{e+2*q+1}], v[{e+2*q}:{e+2*q+1}], 1.0 op_sel_hi:[1,0]"))
        for q in range(8): c.append(I(f"v_rcp_f32 v{e+q}, v{e+q}"))
        for nb in range(2):
            for h in range(2):
                c.append(I(f"v_pk_mul_f32 v[{u[nb]+2*h}:{u[nb]+2*h+1}], v[{u[nb]+2*h}:{u[nb]+2*h+1}], v[{e+4*nb+2*h}:{e+4*nb+2*h+1}]"))
        for nb in range(2):
            for h in range(2):
                c.append(I(f"v_cvt_pk_bf16_f32 v{e+8+2*nb+h}, v{u[nb]+2*h}, v{u[nb]+2*h+1}"))
        if i == 4: c.append(I(f"s_add_u32 s{s_off}, s{s_off}, 4096"))
        c.append(I(f"buffer_store_dwordx4 v[{e+8}:{e+11}], v{v_addr}, s[{S_SRDO}:{S_SRDO+3}], s{s_off} offen offset:{(i%4)*1024}"))
    return c
```

```python
from asmlib import *

WS_XN = 0
WS_QKV = 4 << 20
WS_HO = 16 << 20
WS_END = WS_HO + 16 * 144 * 8192


def reduce_p(v, t):
    return block(f"""
    v_add_f32_dpp v{v}, v{v}, v{v} row_ror:8 row_mask:0xf bank_mask:0xf
    v_mov_b32 v{t}, v{v}
    v_permlane16_swap_b32 v{v}, v{t}
    v_add_f32 v{v}, v{v}, v{t}
    v_mov_b32 v{t}, v{v}
    v_permlane32_swap_b32 v{v}, v{t}
    v_add_f32 v{v}, v{v}, v{t}
    """)


def gen_ln(name):
    P = Program()
    c = []
    c += block(f"""
    s_cmp_ge_u32 s2, 256
    s_cbranch_scc1 L_{name}_end
    s_load_dwordx2 s[4:5], s[0:1], 0
    s_load_dwordx2 s[6:7], s[0:1], 72
    v_and_b32 v1, 7, v0                 ; t
    v_bfe_u32 v2, v0, 3, 3              ; p
    v_lshrrev_b32 v3, 6, v0             ; w
    s_lshl_b32 s3, s2, 14
    v_lshlrev_b32 v4, 11, v1
    v_lshl_add_u32 v4, v3, 9, v4        ; + w*512
    v_lshl_add_u32 v4, v2, 4, v4        ; + p*16
    """)
    c += srd(8, 4, 4194304) + srd(12, 6, WS_END)
    for j in range(4):
        c.append(I(f"buffer_load_dwordx4 v[{8+4*j}:{11+4*j}], v4, s[8:11], s3 offen offset:{128*j}"))
    c += block(f"""
    s_lshr_b32 s16, s2, 5
    s_lshl_b32 s16, s16, 19             ; mt*32*16*1024
    s_bfe_u32 s17, s2, 0x40001          ; (wg>>1)&15
    s_lshl_b32 s17, s17, 10
    s_add_u32 s16, s16, s17
    s_and_b32 s17, s2, 1
    s_lshl_b32 s17, s17, 7              ; (wg&1)*8*16
    s_add_u32 s16, s16, s17
    v_lshrrev_b32 v5, 2, v2             ; p>>2
    v_lshl_add_u32 v5, v3, 3, v5        ; 8w + (p>>2)
    v_lshlrev_b32 v5, 14, v5            ; *16KB
    v_and_b32 v6, 3, v2
    v_lshl_add_u32 v5, v6, 8, v5        ; + G*256
    v_lshl_add_u32 v5, v1, 4, v5        ; + t*16
    v_lshlrev_b32 v6, 4, v1
    v_lshl_add_u32 v7, v3, 2, v6
    """)
    for r in range(16):
        c.append(I(f"v_lshlrev_b32 v{32+2*r}, 16, v{8+r}"))
        c.append(I(f"v_and_b32 v{33+2*r}, 0xffff0000, v{8+r}"))
    for k in range(4):
        c.append(I(f"v_add_f32 v{24+k}, v{32+k}, v{36+k}"))
    for r in range(8, 32):
        c.append(I(f"v_add_f32 v{24+r%4}, v{24+r%4}, v{32+r}"))
    c += block("""
    v_add_f32 v24, v24, v25
    v_add_f32 v26, v26, v27
    v_add_f32 v24, v24, v26
    """)
    c += reduce_p(24, 25)
    c += block("""
    ds_write_b32 v7, v24
    s_waitcnt lgkmcnt(0)
    s_barrier
    ds_read_b128 v[24:27], v6
    v_add_f32 v24, v24, v25
    v_add_f32 v26, v26, v27
    v_add_f32 v24, v24, v26
    v_mul_f32 v28, 0x3a800000, v24
    """)
    for r in range(32):
        t = 8 + r % 8
        c.append(I(f"v_sub_f32 v{t}, v{32+r}, v28"))
        if r < 4: c.append(I(f"v_mul_f32 v{24+r}, v{t}, v{t}"))
        else: c.append(I(f"v_fmac_f32 v{24+r%4}, v{t}, v{t}"))
    c += block("""
    v_add_f32 v24, v24, v25
    v_add_f32 v26, v26, v27
    v_add_f32 v24, v24, v26
    """)
    c += reduce_p(24, 25)
    c += block("""
    ds_write_b32 v7, v24 offset:128
    v_cvt_pk_bf16_f32 v28, v28, v28
    v_lshlrev_b32 v28, 16, v28
    s_waitcnt lgkmcnt(0)
    s_barrier
    ds_read_b128 v[24:27], v6 offset:128
    """)
    for r in range(16):
        c.append(I(f"v_sub_f32 v{32+2*r}, v{32+2*r}, v28"))
        c.append(I(f"v_sub_f32 v{33+2*r}, v{33+2*r}, v28"))
        c.append(I(f"v_cvt_pk_bf16_f32 v{8+r}, v{32+2*r}, v{33+2*r}"))
    c += block("""
    v_add_f32 v24, v24, v25
    v_add_f32 v26, v26, v27
    v_add_f32 v24, v24, v26
    v_mul_f32 v24, 0x3a800000, v24      ; var
    v_cvt_pk_bf16_f32 v24, v24, v24
    v_lshlrev_b32 v24, 16, v24
    v_add_f32 v24, 0x3727c5ac, v24      ; + 1e-5
    v_cvt_pk_bf16_f32 v24, v24, v24
    v_lshlrev_b32 v24, 16, v24
    v_sqrt_f32 v24, v24
    v_cvt_pk_bf16_f32 v24, v24, v24
    v_lshlrev_b32 v24, 16, v24
    v_rcp_f32 v24, v24
    """)
    for j in range(4):
        for r in range(4 * j, 4 * j + 4):
            c.append(I(f"v_lshlrev_b32 v{32+2*r}, 16, v{8+r}"))
            c.append(I(f"v_and_b32 v{33+2*r}, 0xffff0000, v{8+r}"))
            c.append(I(f"v_mul_f32 v{32+2*r}, v{32+2*r}, v24"))
            c.append(I(f"v_mul_f32 v{33+2*r}, v{33+2*r}, v24"))
            c.append(I(f"v_cvt_pk_bf16_f32 v{8+r}, v{32+2*r}, v{33+2*r}"))
        c.append(I(f"s_add_u32 s17, s16, {WS_XN + j * 32768}"))
        c.append(I(f"buffer_store_dwordx4 v[{8+4*j}:{11+4*j}], v5, s[12:15], s17 offen"))
    c += [I(f"L_{name}_end:"), I("s_endpgm")]
    P.add(c); P.trace(c)
    return P.finish(), kd(name, 64, 0, 32), dict(grid=256, block=256, lds=256)
```

```python
from gen import *
import k_gemm1, k_attn, k_final
def build(path, st):
    ks = [("ln_kernel", gen_ln("ln_kernel")),
          ("gemm1_kernel", k_gemm1.gen_gemm1("gemm1_kernel", stamp=make_stamp(1, 3, k_gemm1.S_W) if st else None)),
          ("attn_kernel", k_attn.gen_attn("attn_kernel", stamp=make_stamp(2, 3, k_attn.S_W) if st else None)),
          ("final_kernel", k_final.gen_final("final_kernel", stamp=make_stamp(3, 3, k_final.S_W) if st else None))]
    assemble_file(ks, path)
build("g2.s", True); build("g2_ns.s", False)
```

```python
from asmlib import *
from k_ln import WS_XN, WS_QKV, WS_HO, WS_END

V_KA, V_VA0, V_VA1, V_DK = 1, 2, 3, 4
V_Q, V_SEL, V_L, V_O, V_S, V_P, V_K, V_V, V_X = 8, 24, 28, 40, 72, 104, 120, 136, 152
CFG = dict(lag=1, fo="v", fk="v", nods=False, nobar=False, order=0)
S_SRDK, S_SRDV, S_SRDW = 8, 12, 16
S_KOFF, S_M0, S_LOOP, S_W, S_QOFF, S_OOFF = 20, 21, 22, 23, 24, 25
SLOT = 16384


def kv_dma(slot):
    tag = f"KV{slot}"
    return [[I(f"s_add_u32 m0, s{S_M0}, {slot*SLOT}")],
            [I(f"buffer_load_dwordx4 v{V_DK}, s[{S_SRDK}:{S_SRDK+3}], s{S_KOFF} offen lds", tag)],
            [I(f"buffer_load_dwordx4 v{V_DK}, s[{S_SRDK}:{S_SRDK+3}], s{S_KOFF} offen offset:1024 lds", tag)],
            [I(f"s_add_u32 m0, s{S_M0}, {slot*SLOT+8192}")],
            [I(f"buffer_load_dwordx4 v{V_DK}, s[{S_SRDV}:{S_SRDV+3}], s{S_KOFF} offen lds", tag)],
            [I(f"buffer_load_dwordx4 v{V_DK}, s[{S_SRDV}:{S_SRDV+3}], s{S_KOFF} offen offset:1024 lds", tag)],
            [I(f"s_add_u32 s{S_KOFF}, s{S_KOFF}, 8192")]]


def k_read(T):
    T %= 16
    base = (T >> 2) * SLOT + (T & 3) * 2048
    d = V_K + 8 * (T & 1)
    return [I(f"ds_read_b128 {CFG['fk']}[{d+4*m}:{d+4*m+3}], v{V_KA} offset:{base + m*512}") for m in range(2)]


def v_read(T):
    T %= 16
    base = (T >> 2) * SLOT + 8192 + (T & 3) * 2048
    d = V_V + 8 * (T & 1)
    return [I(f"ds_read_b64_tr_b16 {CFG['fk']}[{d+4*m+2*z}:{d+4*m+2*z+1}], v{V_VA0+z} offset:{base + m*1024}") for m in range(2) for z in range(2)]


def qk(u):
    T, qb = u >> 1, u & 1
    s = V_S + 16 * (u & 1); k = V_K + 8 * (T & 1); q = V_Q + 8 * qb
    f = CFG["fk"]
    return [I(f"v_mfma_f32_32x32x16_bf16 v[{s}:{s+15}], {f}[{k}:{k+3}], {f}[{q}:{q+3}], 0"),
            I(f"v_mfma_f32_32x32x16_bf16 v[{s}:{s+15}], {f}[{k+4}:{k+7}], {f}[{q+4}:{q+7}], v[{s}:{s+15}]")]


def pv(u):
    T, qb = u >> 1, u & 1
    o = V_O + 16 * qb; v = V_V + 8 * (T & 1); p = V_P + 8 * (u & 1); l = V_L + 4 * qb
    f = CFG["fk"]; g = CFG["fo"]
    return ([I(f"v_mfma_f32_32x32x16_bf16 {g}[{o}:{o+15}], {f}[{v+4*m}:{v+4*m+3}], v[{p+4*m}:{p+4*m+3}], {g}[{o}:{o+15}]") for m in range(2)],
            [I(f"v_mfma_f32_16x16x32_bf16 {g}[{l}:{l+3}], v[{V_SEL}:{V_SEL+3}], v[{p+4*m}:{p+4*m+3}], {g}[{l}:{l+3}]") for m in range(2)])


def cvt(u, j):
    p = V_P + 8 * (u & 1)
    return I(f"v_cvt_pk_bf16_f32 v{p+j}, v{V_X+2*j}, v{V_X+2*j+1}")


def slot_code(u):
    s = V_S + 16 * (u & 1); lag = CFG["lag"]
    A = qk(u + 1); PV, SM = pv(u - 1)
    after = {}
    for j in range(8):
        k = 2 * j + 1 + lag
        if k < 16: after.setdefault(k, []).append(cvt(u, j))
        else: after.setdefault(k - 16, []).append(cvt(u - 1, j))
    mf = [(A[0], 32), (A[1], 32), (PV[0], 32), (SM[0], 16), (PV[1], 32), (SM[1], 16)]
    if CFG["order"] == 1: mf = [(A[0], 32), (A[1], 32), (PV[0], 32), (SM[0], 16), (SM[1], 16), (PV[1], 32)]
    seq = []; t = 0; free = 0
    va = []
    for r in range(16):
        va.append((I(f"v_exp_f32 v{V_X+r}, v{s+r}"), 8))
        for x in after.get(r, []): va.append((x, 4))
    gap = CFG.get("gap", 0)
    for x, c in va:
        if mf and t >= free:
            m, d = mf.pop(0); seq.append(m); free = t + d + gap; t += 8
        seq.append(x); t += c
    assert not mf
    return seq


def shadow_fill(seq, fillers, start=0):
    pos = [k for k, x in enumerate(seq) if x.kind in ("trans", "mfma")]
    fill = {}
    for n, f in enumerate(fillers):
        fill.setdefault(pos[start + n], []).extend(f if isinstance(f, list) else [f])
    return weave(seq, fill)


def chunk(c):
    out = []
    for t in range(8):
        u = 8 * c + t
        seq = slot_code(u)
        T = u >> 1
        f = []
        if t == 6:
            f = [[WAITLG(), WAITVM(f"KV{(c+1)%4}"), I("s_barrier")]] + [[x] for x in k_read(T + 1)] + kv_dma(c)
            if CFG["nobar"]: f = [[x] for x in k_read(T + 1)]
            if CFG["nods"]: f = []
            out += shadow_fill(seq, f, 2)
            continue
        if t % 2 == 0: f = [[x] for x in k_read(T + 1)]
        else: f = [[x] for x in v_read(T + 1)] if t != 7 else [[x] for x in v_read(T + 1)]
        if CFG["nods"]: f = []
        out += shadow_fill(seq, f, CFG.get("fstart", 2))
    return out


def gen_attn(name, stamp=None, cfg=None):
    CFG.update(cfg or {})
    P = Program()
    pre = (stamp("entry") if stamp else []) + block(f"""
    s_cmp_ge_u32 s2, 256
    s_cbranch_scc1 L_{name}_end
    s_load_dwordx2 s[6:7], s[0:1], 72       ; ws
    v_lshrrev_b32 v5, 6, v0
    v_and_b32 v0, 63, v0
    v_readfirstlane_b32 s{S_W}, v5
    s_and_b32 s30, s2, 7
    s_lshl_b32 s30, s30, 2
    s_bfe_u32 s31, s2, 0x20003
    s_add_u32 s30, s30, s31                 ; head
    s_lshr_b32 s31, s2, 5                   ; q tile
    s_lshl_b32 s32, s30, 17                 ; head*128KB
    s_lshl_b32 s33, s31, 14
    s_lshl_b32 s34, s{S_W}, 12
    s_add_u32 s33, s33, s34
    s_add_u32 s{S_QOFF}, s32, s33
    s_add_u32 s{S_QOFF}, s{S_QOFF}, {WS_QKV}
    s_lshl_b32 s33, s31, 1
    s_lshr_b32 s34, s{S_W}, 1
    s_add_u32 s33, s33, s34                 ; mt128
    s_mul_i32 s33, s33, 144
    s_add_u32 s33, s33, s30
    s_add_u32 s33, s33, 112
    s_lshl_b32 s33, s33, 13
    s_and_b32 s34, s{S_W}, 1
    s_lshl_b32 s34, s34, 12
    s_add_u32 s33, s33, s34
    s_add_u32 s{S_OOFF}, s33, {WS_HO}
    s_mov_b32 s{S_KOFF}, 0
    s_lshl_b32 s{S_M0}, s{S_W}, 11
    v_lshlrev_b32 v{V_DK}, 4, v0
    v_add_u32 v{V_DK}, s{S_M0}, v{V_DK}
    v_bfe_u32 v5, v0, 4, 1
    v_lshrrev_b32 v6, 5, v0                 ; hh
    v_and_b32 v7, 15, v0
    v_lshlrev_b32 v{V_KA}, 10, v5
    v_lshl_add_u32 v{V_KA}, v6, 8, v{V_KA}
    v_lshl_add_u32 v{V_KA}, v7, 4, v{V_KA}
    s_waitcnt lgkmcnt(0)
    s_add_u32 s32, s32, {WS_QKV + (4 << 20)}
    s_add_u32 s{S_SRDK}, s6, s32
    s_addc_u32 s{S_SRDK+1}, s7, 0
    s_mov_b32 s{S_SRDK+2}, 131072
    s_mov_b32 s{S_SRDK+3}, 0x20000
    s_add_u32 s{S_SRDV}, s{S_SRDK}, {4 << 20}
    s_addc_u32 s{S_SRDV+1}, s{S_SRDK+1}, 0
    s_mov_b32 s{S_SRDV+2}, 131072
    s_mov_b32 s{S_SRDV+3}, 0x20000
    """)
    pre += srd(S_SRDW, 6, WS_END)
    for g in kv_dma(0): pre += g
    for qb in range(2):
        for m in range(2):
            d = V_Q + 8 * qb + 4 * m
            pre.append(I(f"buffer_load_dwordx4 {CFG['fk']}[{d}:{d+3}], v{V_KA}, s[{S_SRDW}:{S_SRDW+3}], s{S_QOFF} offen offset:{qb*2048+m*512}"))
    for c in range(1, 4):
        for g in kv_dma(c): pre += g
    pre += block(f"""
    v_and_b32 v7, 3, v0                     ; c
    v_xor_b32 v6, v6, v7                    ; hh ^ c
    v_lshlrev_b32 v{V_VA0}, 8, v7           ; c*256
    v_lshl_add_u32 v{V_VA0}, v6, 6, v{V_VA0}   ; + (hh^c)*64
    v_bfe_u32 v7, v0, 2, 2                  ; r
    v_lshl_add_u32 v{V_VA0}, v7, 4, v{V_VA0}
    v_lshl_add_u32 v{V_VA0}, v5, 3, v{V_VA0}   ; + dhalf*8
    v_xor_b32 v{V_VA1}, 128, v{V_VA0}
    v_bfe_u32 v6, v0, 2, 1
    v_cmp_eq_u32 vcc, v5, v6
    v_mov_b32 v7, 0x3f803f80
    v_cndmask_b32 v{V_SEL}, 0, v7, vcc
    v_mov_b32 v{V_SEL+1}, v{V_SEL}
    v_mov_b32 v{V_SEL+2}, v{V_SEL}
    v_mov_b32 v{V_SEL+3}, v{V_SEL}
    s_mov_b32 s{S_LOOP}, 4
    """)
    def zero(f, r): return I(f"v_mov_b32 v{r}, 0") if f == "v" else I(f"v_accvgpr_write_b32 a{r}, 0")
    for r in list(range(V_L, V_L + 8)) + list(range(V_O, V_O + 32)): pre.append(zero(CFG["fo"], r))
    for r in list(range(V_P + 8, V_P + 16)) + list(range(V_X, V_X + 16)): pre.append(zero("v", r))
    for r in range(V_V + 8, V_V + 16): pre.append(zero(CFG["fk"], r))
    pre += [WAITVM("KV0"), I("s_barrier")]
    if stamp: pre += stamp(0)
    pre += k_read(0) + v_read(0) + qk(0) + [I("s_waitcnt vmcnt(12)"), I("s_nop 9")]
    body = []
    for c in range(4): body += chunk(c)
    body += block(f"""
    s_sub_u32 s{S_LOOP}, s{S_LOOP}, 1
    s_cmp_lg_u32 s{S_LOOP}, 0
    s_cbranch_scc1 L_{name}_loop
    """)
    lab = I(f"L_{name}_loop:")
    PV, SM = pv(31)
    post = [cvt(31, j) for j in range(8) if 2 * j + 1 + CFG["lag"] >= 16] + [PV[0], SM[0], PV[1], SM[1]]
    if stamp: post += stamp(1)
    if CFG["fo"] == "a":
        for r in list(range(V_L, V_L + 8)) + list(range(V_O, V_O + 32)): post.append(I(f"v_accvgpr_read_b32 v{r}, a{r}"))
    for qb in range(2):
        o = V_O + 16 * qb; l = V_L + 4 * qb; t = V_S + 8 * qb
        post.append(I(f"v_rcp_f32 v{l}, v{l}"))
        for r in range(16): post.append(I(f"v_mul_f32 v{o+r}, v{o+r}, v{l}"))
        for g in range(2):
            for n, a in enumerate((g, g + 2)):
                for h in range(2):
                    post.append(I(f"v_cvt_pk_bf16_f32 v{t+4*g+2*n+h}, v{o+4*a+2*h}, v{o+4*a+2*h+1}"))
            post.append(I(f"buffer_store_dwordx4 v[{t+4*g}:{t+4*g+3}], v{V_KA}, s[{S_SRDW}:{S_SRDW+3}], s{S_OOFF} offen offset:{qb*2048+g*512}"))
    end = (stamp(2) if stamp else []) + [I(f"L_{name}_end:"), I("s_endpgm")]
    P.add(pre, lab, body, post, end)
    P.trace(pre, body, body, post, end)
    txt = P.finish()
    print(name, "loop waits/nops", P.stats(body), "instrs", len(body))
    return txt, kd(name, 168, 152, 96), dict(grid=256, block=256, lds=4 * SLOT)
```

```python
from asmlib import *
from k_ln import WS_XN, WS_QKV, WS_HO, WS_END
import struct, math

STAGE = 36864
STF = ['']
QSCALE = (32 ** -0.5) * math.log2(math.e)


def f2u(x):
    return struct.unpack("<I", struct.pack("<f", x))[0]


V_XA, V_XB = 1, 2
V_W = [[3, 4], [5, 6]]
V_DX = 7
V_DW = [8, 9, 10, 11, 12]
V_T0, V_T1, V_T2 = 13, 14, 15
A_X = 80
A_W = 144


def acc(i, j):
    if j < 2: idx = i * 2 + j; return ("a", 4 * idx)
    if i == 7 and j >= 6: return ("a", 64 + 4 * (j - 6))
    k = i * 8 + (j - 2)
    return ("v", 16 + 4 * k)


S_SRDX = 8
S_SRDW = [12, 16, 20, 24, 28]
S_SRDO = 32
S_XOFF, S_W0, S_W12, S_W34, S_W12STEP = 36, 37, 38, 39, 40
S_M0X, S_M0W = 41, 42
S_LOOP = 43
S_TYPE, S_C0, S_C1, S_C2, S_G12, S_G34 = 44, 45, 46, 47, 48, 49
S_WM, S_WN, S_W, S_MT = 50, 51, 52, 53


def dma_group(stage):
    g = []
    tag = f"D{stage}"
    g.append([I(f"s_add_u32 m0, s{S_M0W}, {stage*STAGE}"),
              I(f"buffer_load_dwordx4 v{V_DW[0]}, s[{S_SRDW[0]}:{S_SRDW[0]+3}], s{S_W0} offen lds", tag)])
    g.append([I(f"buffer_load_dwordx4 v{V_DW[1]}, s[{S_SRDW[1]}:{S_SRDW[1]+3}], s{S_W12} offen offset:1024 lds", tag),
              I(f"s_add_u32 s{S_W0}, s{S_W0}, {32*6144}")])
    g.append([I(f"buffer_load_dwordx4 v{V_DW[2]}, s[{S_SRDW[2]}:{S_SRDW[2]+3}], s{S_W12} offen offset:2048 lds", tag),
              I(f"s_add_u32 s{S_W12}, s{S_W12}, s{S_W12STEP}")])
    g.append([I(f"buffer_load_dwordx4 v{V_DW[3]}, s[{S_SRDW[3]}:{S_SRDW[3]+3}], s{S_W34} offen offset:3072 lds", tag),
              I(f"s_add_u32 m0, s{S_M0W}, {stage*STAGE+4096}")])
    g.append([I(f"buffer_load_dwordx4 v{V_DW[4]}, s[{S_SRDW[4]}:{S_SRDW[4]+3}], s{S_W34} offen lds", tag),
              I(f"s_add_u32 m0, s{S_M0X}, {stage*STAGE}")])
    for q in range(4):
        l = [I(f"buffer_load_dwordx4 v{V_DX}, s[{S_SRDX}:{S_SRDX+3}], s{S_XOFF} offen offset:{1024*q} lds", tag)]
        if q == 0: l.append(I(f"s_add_u32 s{S_W34}, s{S_W34}, {32*7168}"))
        if q == 3: l.append(I(f"s_add_u32 s{S_XOFF}, s{S_XOFF}, 16384"))
        g.append(l)
    return g


def w_read(stage, j, gblk):
    slot, nb = j >> 1, j & 1
    d = A_W + 4 * (gblk % 4)
    va = V_W[nb][stage >> 1]
    return [I(f"ds_read_b64_tr_b16 a[{d+2*q}:{d+2*q+1}], v{va} offset:{(stage&1)*STAGE + q*5120 + slot*1024}") for q in range(2)]


def x_read(stage, i, xset):
    d = A_X + 32 * xset + 4 * i
    va = V_XA if stage < 2 else V_XB
    return I(f"ds_read_b128 a[{d}:{d+3}], v{va} offset:{(stage&1)*STAGE + i*1024}")


def step(s, cfg):
    st = s % 4; nx = (s + 1) % 4
    main = []
    for j in range(10):
        order = range(8) if j % 2 == 0 else range(7, -1, -1)
        wb = A_W + 4 * ((10 * s + j) % 4)
        for i in order:
            f, r = acc(i, j)
            xb = A_X + 32 * (s % 2) + 4 * i
            main.append(I(f"v_mfma_f32_16x16x32_bf16 {f}[{r}:{r+3}], a[{wb}:{wb+3}], a[{xb}:{xb+3}], {f}[{r}:{r+3}]"))
    fill = {}
    def put(g, l): fill.setdefault(g, []).extend(l if isinstance(l, list) else [l])
    for j in range(7):
        rd = w_read(st, j + 3, 10 * s + j + 3)
        put(8 * j, rd[0]); put(8 * j + 1, rd[1])
    for k, g in enumerate(dma_group((s + 3) % 4)):
        put(cfg["dma0"] + cfg["dmastep"] * k, g)
    bar = cfg["bar"]
    put(bar, [WAITLG(), WAITVM(f"D{nx}"), I("s_barrier")])
    rd = w_read(nx, 0, 10 * s + 10); put(bar + 1, rd[0]); put(bar + 2, rd[1])
    rd = w_read(nx, 1, 10 * s + 11); put(64, rd[0]); put(65, rd[1])
    rd = w_read(nx, 2, 10 * s + 12); put(72, rd[0]); put(73, rd[1])
    gaps = [62, 63, 66, 67, 68, 69, 70, 74]
    for i in range(8): put(gaps[i], x_read(nx, i, (s + 1) % 2))
    return weave(main, fill)


def to_vgpr(f, r, tmp, code):
    if f == "v": return r
    for q in range(4): code.append(I(f"v_accvgpr_read_b32 v{tmp+q}, a{r+q}"))
    return tmp


def epi_qkv(slot, s_off, s_scale, v_addr, T):
    c = []
    for i in range(8):
        t = T[i % 2]
        r = []
        for nb in range(2):
            f, rr = acc(i, 2 * slot + nb)
            r.append(to_vgpr(f, rr, t + 4 * nb, c))
        for nb in range(2):
            for h in range(2):
                c.append(I(f"v_pk_mul_f32 v[{r[nb]+2*h}:{r[nb]+2*h+1}], v[{r[nb]+2*h}:{r[nb]+2*h+1}], s[{s_scale}:{s_scale+1}]"))
        for nb in range(2):
            for h in range(2):
                c.append(I(f"v_cvt_pk_bf16_f32 v{t+8+2*nb+h}, v{r[nb]+2*h}, v{r[nb]+2*h+1}"))
        if i == 4: c.append(I(f"s_add_u32 s{s_off}, s{s_off}, 4096"))
        c.append(I(f"buffer_store_dwordx4 v[{t+8}:{t+11}], v{v_addr}, s[{S_SRDO}:{S_SRDO+3}], s{s_off} offen offset:{(i%4)*1024}{STF[0]}"))
    return c


def epi_pair(sg, su, s_off, s_nl2e, v_addr, T):
    c = []
    for i in range(8):
        t = T[i % 2]
        g = []; u = []
        for nb in range(2):
            f, rr = acc(i, 2 * sg + nb); g.append(to_vgpr(f, rr, t + 4 * nb, c))
            f, rr = acc(i, 2 * su + nb); u.append(to_vgpr(f, rr, t + 8 + 4 * nb, c))
        e = t + 16
        for nb in range(2):
            for h in range(2):
                c.append(I(f"v_pk_mul_f32 v[{e+4*nb+2*h}:{e+4*nb+2*h+1}], v[{g[nb]+2*h}:{g[nb]+2*h+1}], s[{s_nl2e}:{s_nl2e+1}]"))
        for q in range(8): c.append(I(f"v_exp_f32 v{e+q}, v{e+q}"))
        for nb in range(2):
            for h in range(2):
                c.append(I(f"v_pk_mul_f32 v[{u[nb]+2*h}:{u[nb]+2*h+1}], v[{g[nb]+2*h}:{g[nb]+2*h+1}], v[{u[nb]+2*h}:{u[nb]+2*h+1}]"))
        for q in range(4): c.append(I(f"v_pk_add_f32 v[{e+2*q}:{e+2*q+1}], v[{e+2*q}:{e+2*q+1}], 1.0 op_sel_hi:[1,0]"))
        for q in range(8): c.append(I(f"v_rcp_f32 v{e+q}, v{e+q}"))
        for nb in range(2):
            for h in range(2):
                c.append(I(f"v_pk_mul_f32 v[{u[nb]+2*h}:{u[nb]+2*h+1}], v[{u[nb]+2*h}:{u[nb]+2*h+1}], v[{e+4*nb+2*h}:{e+4*nb+2*h+1}]"))
        for nb in range(2):
            for h in range(2):
                c.append(I(f"v_cvt_pk_bf16_f32 v{t+24+2*nb+h}, v{u[nb]+2*h}, v{u[nb]+2*h+1}"))
        if i == 4: c.append(I(f"s_add_u32 s{s_off}, s{s_off}, 4096"))
        c.append(I(f"buffer_store_dwordx4 v[{t+24}:{t+27}], v{v_addr}, s[{S_SRDO}:{S_SRDO+3}], s{s_off} offen offset:{(i%4)*1024}{STF[0]}"))
    return c


def gen_gemm1(name, cfg=None, stamp=None):
    cfg = dict(dict(dma0=3, dmastep=4, bar=58), **(cfg or {}))
    STF[0] = cfg.get('stf', '')
    P = Program()
    pre = (stamp("entry") if stamp else []) + block(f"""
    s_cmp_ge_u32 s2, 256
    s_cbranch_scc1 L_{name}_end
    s_load_dwordx2 s[4:5], s[0:1], 8        ; wqkv
    s_load_dwordx4 s[56:59], s[0:1], 32     ; w_gate, w_up
    s_load_dwordx2 s[6:7], s[0:1], 72       ; ws
    v_lshrrev_b32 v13, 6, v0
    v_and_b32 v0, 63, v0                    ; lane
    v_readfirstlane_b32 s{S_W}, v13         ; wave
    s_and_b32 s60, s2, 7                    ; xcd
    s_lshr_b32 s61, s2, 3
    s_and_b32 s{S_MT}, s61, 7               ; mt
    s_lshr_b32 s61, s61, 3                  ; local column tile 0..3
    s_lshr_b32 s{S_WM}, s{S_W}, 1
    s_and_b32 s{S_WN}, s{S_W}, 1
    ; type A: a = xcd*3+local ; type B (local==3): j = xcd
    s_mul_i32 s62, s60, 3
    s_add_u32 s63, s62, s61                 ; a
    s_add_u32 s64, s62, 24                  ; 24+3j
    s_lshl_b32 s65, s63, 1                  ; 2a
    s_add_u32 s66, s65, 1                   ; 2a+1
    s_add_u32 s67, s60, 48                  ; 48+j
    s_cmp_eq_u32 s61, 3
    s_cselect_b32 s{S_TYPE}, 1, 0
    s_cselect_b32 s{S_C0}, s64, s63         ; slot0 qkv chunk
    s_cselect_b32 s{S_G34}, s67, s66        ; slots 3,4 gate/up chunk
    s_add_u32 s68, s64, 1
    s_add_u32 s69, s64, 2
    s_mov_b32 s70, 6144
    s_cmp_eq_u32 s61, 3
    s_cselect_b32 s{S_C1}, s68, s65         ; slot1 chunk (B: qkv, A: gate)
    s_cselect_b32 s{S_C2}, s69, s65         ; slot2 chunk (B: qkv, A: up)
    s_cselect_b32 s70, s70, 7168            ; slot 1/2 row stride
    s_lshl_b32 s{S_W12STEP}, s70, 5
    s_mov_b32 s{S_XOFF}, 0
    s_mov_b32 s{S_W0}, 0
    s_mov_b32 s{S_W12}, 0
    s_mov_b32 s{S_W34}, 0
    s_lshl_b32 s{S_M0X}, s{S_W}, 12         ; w*4096
    s_mul_i32 s{S_M0W}, s{S_W}, 5120
    s_add_u32 s{S_M0W}, s{S_M0W}, 16384
    ; ---- per lane DMA offsets
    v_lshrrev_b32 v13, 3, v0                ; rho
    v_and_b32 v14, 7, v0                    ; pos
    v_bfe_u32 v15, v0, 4, 1                 ; bit1(rho)
    v_lshlrev_b32 v15, 2, v15               ; 2*(2*bit1)
    v_xor_b32 v14, v14, v15
    v_bfe_u32 v15, v0, 5, 1                 ; bit2(rho)
    v_lshlrev_b32 v15, 1, v15
    v_xor_b32 v14, v14, v15                 ; piece = pos ^ 2t
    v_lshlrev_b32 v14, 4, v14               ; *16 bytes
    v_and_b32 v15, 3, v13
    v_lshrrev_b32 v13, 2, v13
    v_lshl_add_u32 v13, v13, 3, v15         ; (rho&3) + 8*(rho>>2)
    s_lshl_b32 s71, s{S_WM}, 4
    s_lshl_b32 s72, s{S_WN}, 2
    s_add_u32 s71, s71, s72                 ; 16*(w>>1) + 4*(w&1)
    v_add_u32 v13, s71, v13                 ; k row
    s_mov_b32 s72, 6144
    v_mul_lo_u32 v8, v13, s72
    v_mul_lo_u32 v9, v13, s70
    s_mov_b32 s72, 7168
    v_mul_lo_u32 v11, v13, s72
    v_add_u32 v8, v8, v14
    v_add_u32 v9, v9, v14
    v_add_u32 v11, v11, v14
    s_lshl_b32 s72, s{S_C0}, 7
    s_add_u32 s72, s72, 4096
    v_add_u32 v8, s72, v8
    s_lshl_b32 s72, s{S_C2}, 7
    s_add_u32 s72, s72, 2048
    v_add_u32 v10, s72, v9
    s_lshl_b32 s72, s{S_C1}, 7
    s_add_u32 s72, s72, 3072
    v_add_u32 v9, s72, v9
    s_lshl_b32 s72, s{S_G34}, 7
    s_add_u32 s73, s72, 4096
    v_add_u32 v12, s73, v11
    s_add_u32 s73, s72, 1024
    v_add_u32 v11, s73, v11
    v_lshlrev_b32 v{V_DX}, 4, v0
    s_lshl_b32 s72, s{S_W}, 12
    v_add_u32 v{V_DX}, s72, v{V_DX}         ; lane*16 + w*4096
    s_waitcnt lgkmcnt(0)
    """)
    NQ, NG = 1024 * 6144 + 4096, 1024 * 7168 + 4096
    pre += srd(S_SRDW[0], 4, NQ, -4096) + srd(S_SRDW[3], 56, NG, -4096) + srd(S_SRDW[4], 58, NG, -4096)
    pre += block(f"""
    s_cmp_eq_u32 s{S_TYPE}, 1
    s_cselect_b32 s{S_SRDW[1]}, s{S_SRDW[0]}, s{S_SRDW[3]}
    s_cselect_b32 s{S_SRDW[1]+1}, s{S_SRDW[0]+1}, s{S_SRDW[3]+1}
    s_cselect_b32 s{S_SRDW[1]+2}, s{S_SRDW[0]+2}, s{S_SRDW[3]+2}
    s_mov_b32 s{S_SRDW[1]+3}, 0x20000
    s_cselect_b32 s{S_SRDW[2]}, s{S_SRDW[0]}, s{S_SRDW[4]}
    s_cselect_b32 s{S_SRDW[2]+1}, s{S_SRDW[0]+1}, s{S_SRDW[4]+1}
    s_cselect_b32 s{S_SRDW[2]+2}, s{S_SRDW[0]+2}, s{S_SRDW[3]+2}
    s_mov_b32 s{S_SRDW[2]+3}, 0x20000
    s_lshl_b32 s72, s{S_MT}, 19
    s_add_u32 s{S_SRDX}, s6, s72
    s_addc_u32 s{S_SRDX+1}, s7, 0
    s_mov_b32 s{S_SRDX+2}, 524288
    s_mov_b32 s{S_SRDX+3}, 0x20000
    """)
    assert WS_XN == 0
    pre += srd(S_SRDO, 6, WS_END)
    for st in range(3):
        for g in dma_group(st): pre += g
    pre += block(f"""
    v_lshlrev_b32 v{V_XA}, 4, v0
    s_lshl_b32 s72, s{S_WM}, 13
    v_add_u32 v{V_XA}, s72, v{V_XA}
    v_add_u32 v{V_XB}, {2*STAGE}, v{V_XA}
    v_bfe_u32 v13, v0, 2, 3                 ; rho = 4g + r
    v_lshlrev_b32 v14, 7, v13               ; rho*128
    v_lshrrev_b32 v15, 5, v0                ; hh
    v_mul_u32_u24 v15, 10240, v15
    v_add_u32 v14, v14, v15
    v_and_b32 v15, 3, v0
    v_lshl_add_u32 v14, v15, 3, v14         ; + cc*8
    v_add_u32 v14, 16384, v14
    v_bfe_u32 v15, v0, 3, 1                 ; bit1(rho)
    v_lshlrev_b32 v15, 1, v15
    v_bfe_u32 v13, v0, 4, 1                 ; bit2(rho)
    v_or_b32 v15, v15, v13                  ; t
    s_lshl_b32 s72, s{S_WN}, 1
    v_xor_b32 v15, s72, v15                 ; (2wn) ^ t
    v_lshl_add_u32 v{V_W[0][0]}, v15, 5, v14
    v_xor_b32 v{V_W[1][0]}, 32, v{V_W[0][0]}
    v_add_u32 v{V_W[0][1]}, {2*STAGE}, v{V_W[0][0]}
    v_add_u32 v{V_W[1][1]}, {2*STAGE}, v{V_W[1][0]}
    """)
    for r in range(16, 256): pre.append(I(f"v_mov_b32 v{r}, 0"))
    for r in range(80): pre.append(I(f"v_accvgpr_write_b32 a{r}, 0"))
    pre += [I(f"s_mov_b32 s{S_LOOP}, 8"), WAITVM("D0"), I("s_barrier")]
    if stamp: pre += stamp(0)
    for j in range(3): pre += w_read(0, j, j)
    for i in range(8): pre.append(x_read(0, i, 0))
    body = []
    for s in range(4): body += step(s, cfg)
    body += block(f"""
    s_sub_u32 s{S_LOOP}, s{S_LOOP}, 1
    s_cmp_lg_u32 s{S_LOOP}, 0
    s_cbranch_scc1 L_{name}_loop
    """)
    lab = I(f"L_{name}_loop:")
    S_SC, S_OFF, S_NL = 60, 62, 64
    def qkv_setup(sc):
        return block(f"""
    s_lshl_b32 s66, s{sc}, 1
    s_add_u32 s66, s66, s{S_WN}
    s_lshl_b32 s66, s66, 17
    s_add_u32 s{S_OFF}, s66, s67
    s_cmp_lt_u32 s{sc}, 16
    s_cselect_b32 s{S_SC}, {f2u(QSCALE)}, 1.0
    s_mov_b32 s{S_SC+1}, s{S_SC}
    s_cmp_ge_u32 s{sc}, 32
    s_cselect_b32 s66, -1, 0
    v_and_b32 v3, s66, v2
    v_xor_b32 v3, v3, v1
    """)
    def pair_setup(sc):
        return block(f"""
    s_lshl_b32 s66, s{sc}, 1
    s_add_u32 s66, s66, s{S_WN}
    s_lshl_b32 s66, s66, 13
    s_add_u32 s{S_OFF}, s66, s68
    """)
    e0 = (stamp(1) if stamp else []) + block(f"""
    s_waitcnt lgkmcnt(0)
    v_lshlrev_b32 v1, 4, v0                 ; lane*16
    v_lshrrev_b32 v2, 4, v0
    v_lshlrev_b32 v2, 6, v2                 ; G*64 : v swizzle mask
    s_lshl_b32 s67, s{S_MT}, 4
    s_lshl_b32 s66, s{S_WM}, 3
    s_add_u32 s67, s67, s66
    s_lshl_b32 s67, s67, 10
    s_add_u32 s67, s67, {WS_QKV}            ; qkv base + tb0*1024
    s_lshl_b32 s68, s{S_MT}, 1
    s_add_u32 s68, s68, s{S_WM}
    s_mul_i32 s68, s68, {144*8192}
    s_add_u32 s68, s68, {WS_HO}
    s_mov_b32 s{S_NL}, {f2u(-math.log2(math.e))}
    s_mov_b32 s{S_NL+1}, s{S_NL}
    """)
    e0 += qkv_setup(S_C0) + epi_qkv(0, S_OFF, S_SC, 3, [4, 4])
    e0 += block(f"""
    s_cmp_eq_u32 s{S_TYPE}, 1
    s_cbranch_scc1 L_{name}_B
    """)
    eA = pair_setup(S_C1) + epi_pair(1, 2, S_OFF, S_NL, 1, [4 - 16, 4 - 16]) + [I(f"s_branch L_{name}_C")]
    labB = I(f"L_{name}_B:")
    eB = qkv_setup(S_C1) + epi_qkv(1, S_OFF, S_SC, 3, [4, 4]) + qkv_setup(S_C2) + epi_qkv(2, S_OFF, S_SC, 3, [4, 4])
    labC = I(f"L_{name}_C:")
    eC = pair_setup(S_G34) + epi_pair_last(S_OFF, S_NL, 1)
    end = (stamp(2) if stamp else []) + [I(f"L_{name}_end:"), I("s_endpgm")]
    P.add(pre, lab, body, e0, eA, labB, eB, labC, eC, end)
    P.trace(pre, body, body, e0, eA, eC, end)
    P.trace(pre, body, body, e0, eB, eC, end)
    txt = P.finish()
    print(name, "loop waits/nops", P.stats(body), "instrs", len(body))
    return txt, kd(name, 256, 160, 96), dict(grid=256, block=256, lds=4 * STAGE)


def epi_pair_last(s_off, s_nl2e, v_addr):
    c = []
    for i in range(8):
        e = 16 + 32 * (i % 2)
        cp = 16 + 32 * 2
        g = []; u = []
        for nb in range(2):
            f, rr = acc(i, 6 + nb); g.append(to_vgpr(f, rr, cp + 4 * nb, c))
            f, rr = acc(i, 8 + nb); u.append(to_vgpr(f, rr, cp + 8 + 4 * nb, c))
        for nb in range(2):
            for h in range(2):
                c.append(I(f"v_pk_mul_f32 v[{e+4*nb+2*h}:{e+4*nb+2*h+1}], v[{g[nb]+2*h}:{g[nb]+2*h+1}], s[{s_nl2e}:{s_nl2e+1}]"))
        for q in range(8): c.append(I(f"v_exp_f32 v{e+q}, v{e+q}"))
        for nb in range(2):
            for h in range(2):
                c.append(I(f"v_pk_mul_f32 v[{u[nb]+2*h}:{u[nb]+2*h+1}], v[{g[nb]+2*h}:{g[nb]+2*h+1}], v[{u[nb]+2*h}:{u[nb]+2*h+1}]"))
        for q in range(4): c.append(I(f"v_pk_add_f32 v[{e+2*q}:{e+2*q+1}], v[{e+2*q}:{e+2*q+1}], 1.0 op_sel_hi:[1,0]"))
        for q in range(8): c.append(I(f"v_rcp_f32 v{e+q}, v{e+q}"))
        for nb in range(2):
            for h in range(2):
                c.append(I(f"v_pk_mul_f32 v[{u[nb]+2*h}:{u[nb]+2*h+1}], v[{u[nb]+2*h}:{u[nb]+2*h+1}], v[{e+4*nb+2*h}:{e+4*nb+2*h+1}]"))
        for nb in range(2):
            for h in range(2):
                c.append(I(f"v_cvt_pk_bf16_f32 v{e+8+2*nb+h}, v{u[nb]+2*h}, v{u[nb]+2*h+1}"))
        if i == 4: c.append(I(f"s_add_u32 s{s_off}, s{s_off}, 4096"))
        c.append(I(f"buffer_store_dwordx4 v[{e+8}:{e+11}], v{v_addr}, s[{S_SRDO}:{S_SRDO+3}], s{s_off} offen offset:{(i%4)*1024}{STF[0]}"))
    return c
```

```python
from asmlib import *

WS_XN = 0
WS_QKV = 4 << 20
WS_HO = 16 << 20
WS_END = WS_HO + 16 * 144 * 8192


def reduce_p(v, t):
    return block(f"""
    v_add_f32_dpp v{v}, v{v}, v{v} row_ror:8 row_mask:0xf bank_mask:0xf
    v_mov_b32 v{t}, v{v}
    v_permlane16_swap_b32 v{v}, v{t}
    v_add_f32 v{v}, v{v}, v{t}
    v_mov_b32 v{t}, v{v}
    v_permlane32_swap_b32 v{v}, v{t}
    v_add_f32 v{v}, v{v}, v{t}
    """)


def gen_ln(name, stamp=None):
    P = Program()
    c = stamp('entry') + stamp(0) + stamp(1) if stamp else []
    c += block(f"""
    s_cmp_ge_u32 s2, 256
    s_cbranch_scc1 L_{name}_end
    s_load_dwordx2 s[4:5], s[0:1], 0
    s_load_dwordx2 s[6:7], s[0:1], 72
    v_and_b32 v1, 7, v0                 ; t
    v_bfe_u32 v2, v0, 3, 3              ; p
    v_lshrrev_b32 v3, 6, v0             ; w
    s_lshl_b32 s3, s2, 14
    v_lshlrev_b32 v4, 11, v1
    v_lshl_add_u32 v4, v3, 9, v4        ; + w*512
    v_lshl_add_u32 v4, v2, 4, v4        ; + p*16
    """)
    c += srd(8, 4, 4194304) + srd(12, 6, WS_END)
    for j in range(4):
        c.append(I(f"buffer_load_dwordx4 v[{8+4*j}:{11+4*j}], v4, s[8:11], s3 offen offset:{128*j}"))
    c += block(f"""
    s_lshr_b32 s16, s2, 5
    s_lshl_b32 s16, s16, 19             ; mt*32*16*1024
    s_bfe_u32 s17, s2, 0x40001          ; (wg>>1)&15
    s_lshl_b32 s17, s17, 10
    s_add_u32 s16, s16, s17
    s_and_b32 s17, s2, 1
    s_lshl_b32 s17, s17, 7              ; (wg&1)*8*16
    s_add_u32 s16, s16, s17
    v_lshrrev_b32 v5, 2, v2             ; p>>2
    v_lshl_add_u32 v5, v3, 3, v5        ; 8w + (p>>2)
    v_lshlrev_b32 v5, 14, v5            ; *16KB
    v_and_b32 v6, 3, v2
    v_lshl_add_u32 v5, v6, 8, v5        ; + G*256
    v_lshl_add_u32 v5, v1, 4, v5        ; + t*16
    v_lshlrev_b32 v6, 4, v1
    v_lshl_add_u32 v7, v3, 2, v6
    """)
    for r in range(16):
        c.append(I(f"v_lshlrev_b32 v{32+2*r}, 16, v{8+r}"))
        c.append(I(f"v_and_b32 v{33+2*r}, 0xffff0000, v{8+r}"))
    for k in range(4):
        c.append(I(f"v_add_f32 v{24+k}, v{32+k}, v{36+k}"))
    for r in range(8, 32):
        c.append(I(f"v_add_f32 v{24+r%4}, v{24+r%4}, v{32+r}"))
    c += block("""
    v_add_f32 v24, v24, v25
    v_add_f32 v26, v26, v27
    v_add_f32 v24, v24, v26
    """)
    c += reduce_p(24, 25)
    c += block("""
    ds_write_b32 v7, v24
    s_waitcnt lgkmcnt(0)
    s_barrier
    ds_read_b128 v[24:27], v6
    v_add_f32 v24, v24, v25
    v_add_f32 v26, v26, v27
    v_add_f32 v24, v24, v26
    v_mul_f32 v28, 0x3a800000, v24
    """)
    for r in range(32):
        t = 8 + r % 8
        c.append(I(f"v_sub_f32 v{t}, v{32+r}, v28"))
        if r < 4: c.append(I(f"v_mul_f32 v{24+r}, v{t}, v{t}"))
        else: c.append(I(f"v_fmac_f32 v{24+r%4}, v{t}, v{t}"))
    c += block("""
    v_add_f32 v24, v24, v25
    v_add_f32 v26, v26, v27
    v_add_f32 v24, v24, v26
    """)
    c += reduce_p(24, 25)
    c += block("""
    ds_write_b32 v7, v24 offset:128
    v_cvt_pk_bf16_f32 v28, v28, v28
    v_lshlrev_b32 v28, 16, v28
    s_waitcnt lgkmcnt(0)
    s_barrier
    ds_read_b128 v[24:27], v6 offset:128
    """)
    for r in range(16):
        c.append(I(f"v_sub_f32 v{32+2*r}, v{32+2*r}, v28"))
        c.append(I(f"v_sub_f32 v{33+2*r}, v{33+2*r}, v28"))
        c.append(I(f"v_cvt_pk_bf16_f32 v{8+r}, v{32+2*r}, v{33+2*r}"))
    c += block("""
    v_add_f32 v24, v24, v25
    v_add_f32 v26, v26, v27
    v_add_f32 v24, v24, v26
    v_mul_f32 v24, 0x3a800000, v24      ; var
    v_cvt_pk_bf16_f32 v24, v24, v24
    v_lshlrev_b32 v24, 16, v24
    v_add_f32 v24, 0x3727c5ac, v24      ; + 1e-5
    v_cvt_pk_bf16_f32 v24, v24, v24
    v_lshlrev_b32 v24, 16, v24
    v_sqrt_f32 v24, v24
    v_cvt_pk_bf16_f32 v24, v24, v24
    v_lshlrev_b32 v24, 16, v24
    v_rcp_f32 v24, v24
    """)
    for j in range(4):
        for r in range(4 * j, 4 * j + 4):
            c.append(I(f"v_lshlrev_b32 v{32+2*r}, 16, v{8+r}"))
            c.append(I(f"v_and_b32 v{33+2*r}, 0xffff0000, v{8+r}"))
            c.append(I(f"v_mul_f32 v{32+2*r}, v{32+2*r}, v24"))
            c.append(I(f"v_mul_f32 v{33+2*r}, v{33+2*r}, v24"))
            c.append(I(f"v_cvt_pk_bf16_f32 v{8+r}, v{32+2*r}, v{33+2*r}"))
        c.append(I(f"s_add_u32 s17, s16, {WS_XN + j * 32768}"))
        c.append(I(f"buffer_store_dwordx4 v[{8+4*j}:{11+4*j}], v5, s[12:15], s17 offen"))
    if stamp: c += [I("v_readfirstlane_b32 s20, v3")] + stamp(2)
    c += [I(f"L_{name}_end:"), I("s_endpgm")]
    P.add(c); P.trace(c)
    return P.finish(), kd(name, 64, 0, 96), dict(grid=256, block=256, lds=256)
```

```python
from gen import *
import k_gemm1, k_attn, k_final
ln = gen_ln("ln_kernel"); g1 = k_gemm1.gen_gemm1("gemm1_kernel", cfg=dict(stf=" sc1")); at = k_attn.gen_attn("attn_kernel", cfg=dict(lag=3)); fi = k_final.gen_final("final_kernel")
nop = ("    s_endpgm\n", kd("nop_kernel", 8, 0, 16), dict(grid=256, block=64, lds=0))
base = [("ln_kernel", ln), ("gemm1_kernel", g1), ("attn_kernel", at), ("final_kernel", fi)]
assemble_file(base, "g5_a.s")
assemble_file([("nop_kernel", nop)]*2 + base, "g5_b.s")
assemble_file(base + [("nop_kernel", nop)]*2, "g5_c.s")
assemble_file([("nop_kernel", nop)]*6 + base, "g5_d.s")
```

```python
import sys
from asmlib import *
from k_ln import *
HEADER = open("parallel_sum__softmax_full_mha__swiglu_ffn__prompt.s.ref").read().split("; Override")[0] if False else ""
WS_STAMP = 48 << 20

def make_stamp(kidx, nst, wave_sgpr, lognw=2):
    def stamp(k):
        if k == "entry": return [I("s_memrealtime s[88:89]")]
        c = [I(f"s_memtime s[{80+2*k}:{81+2*k}]")]
        if k == 0: c += [I("s_memrealtime s[90:91]"), I("s_waitcnt lgkmcnt(0)")]
        if k == nst - 1:
            c += block(f"""
            s_memrealtime s[92:93]
            s_load_dwordx2 s[76:77], s[0:1], 72
            s_waitcnt lgkmcnt(0)
            s_add_u32 s76, s76, {WS_STAMP + kidx * 131072}
            s_addc_u32 s77, s77, 0
            s_mov_b32 s78, 131072
            s_mov_b32 s79, 0x20000
            s_lshl_b32 s94, s2, {lognw}
            s_add_u32 s94, s94, s{wave_sgpr}
            s_lshl_b32 s94, s94, 6
            v_mov_b32 v0, s94
            """)
            for q in range(14): c.append(I(f"v_mov_b32 v{2+q}, s{80+q}"))
            c += block("""
            s_mov_b64 exec, 1
            buffer_store_dwordx4 v[2:5], v0, s[76:79], 0 offen
            buffer_store_dwordx4 v[6:9], v0, s[76:79], 0 offen offset:16
            buffer_store_dwordx4 v[10:13], v0, s[76:79], 0 offen offset:32
            buffer_store_dwordx2 v[14:15], v0, s[76:79], 0 offen offset:48
            """)
        return c
    return stamp

def assemble_file(kernels, path):
    head = ""
    for n, (t, d, g) in kernels:
        head += f"; @launch kernel={n} grid=({g['grid']},1,1) block=({g['block']},1,1) lds={g['lds']}\n"
    s = head + '.amdgcn_target "amdgcn-amd-amdhsa--gfx950"\n.text\n'
    seen = set()
    for n, (t, d, g) in kernels:
        if n in seen: continue
        seen.add(n)
        s += f".globl {n}\n.p2align 8\n.type {n},@function\n{n}:\n" + t
    s += '.section .rodata,"a"\n'
    seen = set()
    for n, (t, d, g) in kernels:
        if n in seen: continue
        seen.add(n)
        s += ".p2align 6\n" + d
    open(path, "w").write(s)
```

```python
from asmlib import *
from k_ln import WS_XN, WS_QKV, WS_HO, WS_END
import struct, math

STAGE = 36864
STF = ['']
QSCALE = (32 ** -0.5) * math.log2(math.e)


def f2u(x):
    return struct.unpack("<I", struct.pack("<f", x))[0]


V_XA, V_XB = 1, 2
V_W = [[3, 4], [5, 6]]
V_DX = 7
V_DW = [8, 9, 10, 11, 12]
V_T0, V_T1, V_T2 = 13, 14, 15
A_X = 80
A_W = 144


def acc(i, j):
    if j < 2: idx = i * 2 + j; return ("a", 4 * idx)
    if i == 7 and j >= 6: return ("a", 64 + 4 * (j - 6))
    k = i * 8 + (j - 2)
    return ("v", 16 + 4 * k)


S_SRDX = 8
S_SRDW = [12, 16, 20, 24, 28]
S_SRDO = 32
S_XOFF, S_W0, S_W12, S_W34, S_W12STEP = 36, 37, 38, 39, 40
S_M0X, S_M0W = 41, 42
S_LOOP = 43
S_TYPE, S_C0, S_C1, S_C2, S_G12, S_G34 = 44, 45, 46, 47, 48, 49
S_WM, S_WN, S_W, S_MT = 50, 51, 52, 53
S_PFD, S_PFW, S_PFO = 60, 64, 54


def dma_group(stage):
    g = []
    tag = f"D{stage}"
    g.append([I(f"s_add_u32 m0, s{S_M0W}, {stage*STAGE}"),
              I(f"buffer_load_dwordx4 v{V_DW[0]}, s[{S_SRDW[0]}:{S_SRDW[0]+3}], s{S_W0} offen lds", tag)])
    g.append([I(f"buffer_load_dwordx4 v{V_DW[1]}, s[{S_SRDW[1]}:{S_SRDW[1]+3}], s{S_W12} offen offset:1024 lds", tag),
              I(f"s_add_u32 s{S_W0}, s{S_W0}, {32*6144}")])
    g.append([I(f"buffer_load_dwordx4 v{V_DW[2]}, s[{S_SRDW[2]}:{S_SRDW[2]+3}], s{S_W12} offen offset:2048 lds", tag),
              I(f"s_add_u32 s{S_W12}, s{S_W12}, s{S_W12STEP}")])
    g.append([I(f"buffer_load_dwordx4 v{V_DW[3]}, s[{S_SRDW[3]}:{S_SRDW[3]+3}], s{S_W34} offen offset:3072 lds", tag),
              I(f"s_add_u32 m0, s{S_M0W}, {stage*STAGE+4096}")])
    g.append([I(f"buffer_load_dwordx4 v{V_DW[4]}, s[{S_SRDW[4]}:{S_SRDW[4]+3}], s{S_W34} offen lds", tag),
              I(f"s_add_u32 m0, s{S_M0X}, {stage*STAGE}")])
    for q in range(4):
        l = [I(f"buffer_load_dwordx4 v{V_DX}, s[{S_SRDX}:{S_SRDX+3}], s{S_XOFF} offen offset:{1024*q} lds", tag)]
        if q == 0: l.append(I(f"s_add_u32 s{S_W34}, s{S_W34}, {32*7168}"))
        if q == 3: l.append(I(f"s_add_u32 s{S_XOFF}, s{S_XOFF}, 16384"))
        g.append(l)
    return g


def w_read(stage, j, gblk):
    slot, nb = j >> 1, j & 1
    d = A_W + 4 * (gblk % 4)
    va = V_W[nb][stage >> 1]
    return [I(f"ds_read_b64_tr_b16 a[{d+2*q}:{d+2*q+1}], v{va} offset:{(stage&1)*STAGE + q*5120 + slot*1024}") for q in range(2)]


def x_read(stage, i, xset):
    d = A_X + 32 * xset + 4 * i
    va = V_XA if stage < 2 else V_XB
    return I(f"ds_read_b128 a[{d}:{d+3}], v{va} offset:{(stage&1)*STAGE + i*1024}")


def step(s, cfg):
    st = s % 4; nx = (s + 1) % 4
    main = []
    for j in range(10):
        order = range(8) if j % 2 == 0 else range(7, -1, -1)
        wb = A_W + 4 * ((10 * s + j) % 4)
        for i in order:
            f, r = acc(i, j)
            xb = A_X + 32 * (s % 2) + 4 * i
            main.append(I(f"v_mfma_f32_16x16x32_bf16 {f}[{r}:{r+3}], a[{wb}:{wb+3}], a[{xb}:{xb+3}], {f}[{r}:{r+3}]"))
    fill = {}
    def put(g, l): fill.setdefault(g, []).extend(l if isinstance(l, list) else [l])
    for j in range(7):
        rd = w_read(st, j + 3, 10 * s + j + 3)
        put(8 * j, rd[0]); put(8 * j + 1, rd[1])
    for k, g in enumerate(dma_group((s + 3) % 4)):
        put(cfg["dma0"] + cfg["dmastep"] * k, g)
    if cfg.get("pf") and s == 1:
        put(44, [I(f"buffer_load_dword v13, v14, s[{S_PFD}:{S_PFD+3}], s{S_PFO} offen")])
        put(48, [I(f"buffer_load_dword v15, v14, s[{S_PFW}:{S_PFW+3}], s{S_PFO} offen"), I(f"s_add_u32 s{S_PFO}, s{S_PFO}, {4<<20}")])
    bar = cfg["bar"]
    put(bar, [WAITLG(), WAITVM(f"D{nx}"), I("s_barrier")])
    rd = w_read(nx, 0, 10 * s + 10); put(bar + 1, rd[0]); put(bar + 2, rd[1])
    rd = w_read(nx, 1, 10 * s + 11); put(64, rd[0]); put(65, rd[1])
    rd = w_read(nx, 2, 10 * s + 12); put(72, rd[0]); put(73, rd[1])
    gaps = [62, 63, 66, 67, 68, 69, 70, 74]
    for i in range(8): put(gaps[i], x_read(nx, i, (s + 1) % 2))
    return weave(main, fill)


def to_vgpr(f, r, tmp, code):
    if f == "v": return r
    for q in range(4): code.append(I(f"v_accvgpr_read_b32 v{tmp+q}, a{r+q}"))
    return tmp


def epi_qkv(slot, s_off, s_scale, v_addr, T):
    c = []
    for i in range(8):
        t = T[i % 2]
        r = []
        for nb in range(2):
            f, rr = acc(i, 2 * slot + nb)
            r.append(to_vgpr(f, rr, t + 4 * nb, c))
        for nb in range(2):
            for h in range(2):
                c.append(I(f"v_pk_mul_f32 v[{r[nb]+2*h}:{r[nb]+2*h+1}], v[{r[nb]+2*h}:{r[nb]+2*h+1}], s[{s_scale}:{s_scale+1}]"))
        for nb in range(2):
            for h in range(2):
                c.append(I(f"v_cvt_pk_bf16_f32 v{t+8+2*nb+h}, v{r[nb]+2*h}, v{r[nb]+2*h+1}"))
        if i == 4: c.append(I(f"s_add_u32 s{s_off}, s{s_off}, 4096"))
        c.append(I(f"buffer_store_dwordx4 v[{t+8}:{t+11}], v{v_addr}, s[{S_SRDO}:{S_SRDO+3}], s{s_off} offen offset:{(i%4)*1024}{STF[0]}"))
    return c


def epi_pair(sg, su, s_off, s_nl2e, v_addr, T):
    c = []
    for i in range(8):
        t = T[i % 2]
        g = []; u = []
        for nb in range(2):
            f, rr = acc(i, 2 * sg + nb); g.append(to_vgpr(f, rr, t + 4 * nb, c))
            f, rr = acc(i, 2 * su + nb); u.append(to_vgpr(f, rr, t + 8 + 4 * nb, c))
        e = t + 16
        for nb in range(2):
            for h in range(2):
                c.append(I(f"v_pk_mul_f32 v[{e+4*nb+2*h}:{e+4*nb+2*h+1}], v[{g[nb]+2*h}:{g[nb]+2*h+1}], s[{s_nl2e}:{s_nl2e+1}]"))
        for q in range(8): c.append(I(f"v_exp_f32 v{e+q}, v{e+q}"))
        for nb in range(2):
            for h in range(2):
                c.append(I(f"v_pk_mul_f32 v[{u[nb]+2*h}:{u[nb]+2*h+1}], v[{g[nb]+2*h}:{g[nb]+2*h+1}], v[{u[nb]+2*h}:{u[nb]+2*h+1}]"))
        for q in range(4): c.append(I(f"v_pk_add_f32 v[{e+2*q}:{e+2*q+1}], v[{e+2*q}:{e+2*q+1}], 1.0 op_sel_hi:[1,0]"))
        for q in range(8): c.append(I(f"v_rcp_f32 v{e+q}, v{e+q}"))
        for nb in range(2):
            for h in range(2):
                c.append(I(f"v_pk_mul_f32 v[{u[nb]+2*h}:{u[nb]+2*h+1}], v[{u[nb]+2*h}:{u[nb]+2*h+1}], v[{e+4*nb+2*h}:{e+4*nb+2*h+1}]"))
        for nb in range(2):
            for h in range(2):
                c.append(I(f"v_cvt_pk_bf16_f32 v{t+24+2*nb+h}, v{u[nb]+2*h}, v{u[nb]+2*h+1}"))
        if i == 4: c.append(I(f"s_add_u32 s{s_off}, s{s_off}, 4096"))
        c.append(I(f"buffer_store_dwordx4 v[{t+24}:{t+27}], v{v_addr}, s[{S_SRDO}:{S_SRDO+3}], s{s_off} offen offset:{(i%4)*1024}{STF[0]}"))
    return c


def gen_gemm1(name, cfg=None, stamp=None):
    cfg = dict(dict(dma0=3, dmastep=4, bar=58), **(cfg or {}))
    STF[0] = cfg.get('stf', '')
    P = Program()
    pre = (stamp("entry") if stamp else []) + block(f"""
    s_cmp_ge_u32 s2, 256
    s_cbranch_scc1 L_{name}_end
    s_load_dwordx2 s[4:5], s[0:1], 8        ; wqkv
    s_load_dwordx4 s[56:59], s[0:1], 32     ; w_gate, w_up
    s_load_dwordx2 s[6:7], s[0:1], 72       ; ws
    v_lshrrev_b32 v13, 6, v0
    v_and_b32 v0, 63, v0                    ; lane
    v_readfirstlane_b32 s{S_W}, v13         ; wave
    s_and_b32 s60, s2, 7                    ; xcd
    s_lshr_b32 s61, s2, 3
    s_and_b32 s{S_MT}, s61, 7               ; mt
    s_lshr_b32 s61, s61, 3                  ; local column tile 0..3
    s_lshr_b32 s{S_WM}, s{S_W}, 1
    s_and_b32 s{S_WN}, s{S_W}, 1
    ; type A: a = xcd*3+local ; type B (local==3): j = xcd
    s_mul_i32 s62, s60, 3
    s_add_u32 s63, s62, s61                 ; a
    s_add_u32 s64, s62, 24                  ; 24+3j
    s_lshl_b32 s65, s63, 1                  ; 2a
    s_add_u32 s66, s65, 1                   ; 2a+1
    s_add_u32 s67, s60, 48                  ; 48+j
    s_cmp_eq_u32 s61, 3
    s_cselect_b32 s{S_TYPE}, 1, 0
    s_cselect_b32 s{S_C0}, s64, s63         ; slot0 qkv chunk
    s_cselect_b32 s{S_G34}, s67, s66        ; slots 3,4 gate/up chunk
    s_add_u32 s68, s64, 1
    s_add_u32 s69, s64, 2
    s_mov_b32 s70, 6144
    s_cmp_eq_u32 s61, 3
    s_cselect_b32 s{S_C1}, s68, s65         ; slot1 chunk (B: qkv, A: gate)
    s_cselect_b32 s{S_C2}, s69, s65         ; slot2 chunk (B: qkv, A: up)
    s_cselect_b32 s70, s70, 7168            ; slot 1/2 row stride
    s_lshl_b32 s{S_W12STEP}, s70, 5
    s_mov_b32 s{S_XOFF}, 0
    s_mov_b32 s{S_W0}, 0
    s_mov_b32 s{S_W12}, 0
    s_mov_b32 s{S_W34}, 0
    s_lshl_b32 s{S_M0X}, s{S_W}, 12         ; w*4096
    s_mul_i32 s{S_M0W}, s{S_W}, 5120
    s_add_u32 s{S_M0W}, s{S_M0W}, 16384
    ; ---- per lane DMA offsets
    v_lshrrev_b32 v13, 3, v0                ; rho
    v_and_b32 v14, 7, v0                    ; pos
    v_bfe_u32 v15, v0, 4, 1                 ; bit1(rho)
    v_lshlrev_b32 v15, 2, v15               ; 2*(2*bit1)
    v_xor_b32 v14, v14, v15
    v_bfe_u32 v15, v0, 5, 1                 ; bit2(rho)
    v_lshlrev_b32 v15, 1, v15
    v_xor_b32 v14, v14, v15                 ; piece = pos ^ 2t
    v_lshlrev_b32 v14, 4, v14               ; *16 bytes
    v_and_b32 v15, 3, v13
    v_lshrrev_b32 v13, 2, v13
    v_lshl_add_u32 v13, v13, 3, v15         ; (rho&3) + 8*(rho>>2)
    s_lshl_b32 s71, s{S_WM}, 4
    s_lshl_b32 s72, s{S_WN}, 2
    s_add_u32 s71, s71, s72                 ; 16*(w>>1) + 4*(w&1)
    v_add_u32 v13, s71, v13                 ; k row
    s_mov_b32 s72, 6144
    v_mul_lo_u32 v8, v13, s72
    v_mul_lo_u32 v9, v13, s70
    s_mov_b32 s72, 7168
    v_mul_lo_u32 v11, v13, s72
    v_add_u32 v8, v8, v14
    v_add_u32 v9, v9, v14
    v_add_u32 v11, v11, v14
    s_lshl_b32 s72, s{S_C0}, 7
    s_add_u32 s72, s72, 4096
    v_add_u32 v8, s72, v8
    s_lshl_b32 s72, s{S_C2}, 7
    s_add_u32 s72, s72, 2048
    v_add_u32 v10, s72, v9
    s_lshl_b32 s72, s{S_C1}, 7
    s_add_u32 s72, s72, 3072
    v_add_u32 v9, s72, v9
    s_lshl_b32 s72, s{S_G34}, 7
    s_add_u32 s73, s72, 4096
    v_add_u32 v12, s73, v11
    s_add_u32 s73, s72, 1024
    v_add_u32 v11, s73, v11
    v_lshlrev_b32 v{V_DX}, 4, v0
    s_lshl_b32 s72, s{S_W}, 12
    v_add_u32 v{V_DX}, s72, v{V_DX}         ; lane*16 + w*4096
    s_waitcnt lgkmcnt(0)
    """)
    NQ, NG = 1024 * 6144 + 4096, 1024 * 7168 + 4096
    pre += srd(S_SRDW[0], 4, NQ, -4096) + srd(S_SRDW[3], 56, NG, -4096) + srd(S_SRDW[4], 58, NG, -4096)
    pre += block(f"""
    s_cmp_eq_u32 s{S_TYPE}, 1
    s_cselect_b32 s{S_SRDW[1]}, s{S_SRDW[0]}, s{S_SRDW[3]}
    s_cselect_b32 s{S_SRDW[1]+1}, s{S_SRDW[0]+1}, s{S_SRDW[3]+1}
    s_cselect_b32 s{S_SRDW[1]+2}, s{S_SRDW[0]+2}, s{S_SRDW[3]+2}
    s_mov_b32 s{S_SRDW[1]+3}, 0x20000
    s_cselect_b32 s{S_SRDW[2]}, s{S_SRDW[0]}, s{S_SRDW[4]}
    s_cselect_b32 s{S_SRDW[2]+1}, s{S_SRDW[0]+1}, s{S_SRDW[4]+1}
    s_cselect_b32 s{S_SRDW[2]+2}, s{S_SRDW[0]+2}, s{S_SRDW[3]+2}
    s_mov_b32 s{S_SRDW[2]+3}, 0x20000
    s_lshl_b32 s72, s{S_MT}, 19
    s_add_u32 s{S_SRDX}, s6, s72
    s_addc_u32 s{S_SRDX+1}, s7, 0
    s_mov_b32 s{S_SRDX+2}, 524288
    s_mov_b32 s{S_SRDX+3}, 0x20000
    """)
    assert WS_XN == 0
    pre += srd(S_SRDO, 6, WS_END)
    for st in range(3):
        for g in dma_group(st): pre += g
    pre += block(f"""
    v_lshlrev_b32 v{V_XA}, 4, v0
    s_lshl_b32 s72, s{S_WM}, 13
    v_add_u32 v{V_XA}, s72, v{V_XA}
    v_add_u32 v{V_XB}, {2*STAGE}, v{V_XA}
    v_bfe_u32 v13, v0, 2, 3                 ; rho = 4g + r
    v_lshlrev_b32 v14, 7, v13               ; rho*128
    v_lshrrev_b32 v15, 5, v0                ; hh
    v_mul_u32_u24 v15, 10240, v15
    v_add_u32 v14, v14, v15
    v_and_b32 v15, 3, v0
    v_lshl_add_u32 v14, v15, 3, v14         ; + cc*8
    v_add_u32 v14, 16384, v14
    v_bfe_u32 v15, v0, 3, 1                 ; bit1(rho)
    v_lshlrev_b32 v15, 1, v15
    v_bfe_u32 v13, v0, 4, 1                 ; bit2(rho)
    v_or_b32 v15, v15, v13                  ; t
    s_lshl_b32 s72, s{S_WN}, 1
    v_xor_b32 v15, s72, v15                 ; (2wn) ^ t
    v_lshl_add_u32 v{V_W[0][0]}, v15, 5, v14
    v_xor_b32 v{V_W[1][0]}, 32, v{V_W[0][0]}
    v_add_u32 v{V_W[0][1]}, {2*STAGE}, v{V_W[0][0]}
    v_add_u32 v{V_W[1][1]}, {2*STAGE}, v{V_W[1][0]}
    """)
    if cfg.get("pf"):
        pre += block(f"""
    s_load_dwordx2 s[68:69], s[0:1], 48
    s_load_dwordx2 s[70:71], s[0:1], 16
    s_lshl_b32 s72, s2, 2
    s_add_u32 s72, s72, s{S_W}
    s_lshl_b32 s72, s72, 12
    v_lshlrev_b32 v14, 6, v0
    v_add_u32 v14, s72, v14
    s_mov_b32 s{S_PFO}, {(1 << 32) - cfg["pf"] * (4 << 20)}
    s_waitcnt lgkmcnt(0)
    """) + srd(S_PFD, 68, 3584 * 2048) + srd(S_PFW, 70, 2097152)
    for r in range(16, 256): pre.append(I(f"v_mov_b32 v{r}, 0"))
    for r in range(80): pre.append(I(f"v_accvgpr_write_b32 a{r}, 0"))
    pre += [I(f"s_mov_b32 s{S_LOOP}, 8"), WAITVM("D0"), I("s_barrier")]
    if stamp: pre += stamp(0)
    for j in range(3): pre += w_read(0, j, j)
    for i in range(8): pre.append(x_read(0, i, 0))
    body = []
    for s in range(4): body += step(s, cfg)
    body += block(f"""
    s_sub_u32 s{S_LOOP}, s{S_LOOP}, 1
    s_cmp_lg_u32 s{S_LOOP}, 0
    s_cbranch_scc1 L_{name}_loop
    """)
    lab = I(f"L_{name}_loop:")
    S_SC, S_OFF, S_NL = 60, 62, 64
    def qkv_setup(sc):
        return block(f"""
    s_lshl_b32 s66, s{sc}, 1
    s_add_u32 s66, s66, s{S_WN}
    s_lshl_b32 s66, s66, 17
    s_add_u32 s{S_OFF}, s66, s67
    s_cmp_lt_u32 s{sc}, 16
    s_cselect_b32 s{S_SC}, {f2u(QSCALE)}, 1.0
    s_mov_b32 s{S_SC+1}, s{S_SC}
    s_cmp_ge_u32 s{sc}, 32
    s_cselect_b32 s66, -1, 0
    v_and_b32 v3, s66, v2
    v_xor_b32 v3, v3, v1
    """)
    def pair_setup(sc):
        return block(f"""
    s_lshl_b32 s66, s{sc}, 1
    s_add_u32 s66, s66, s{S_WN}
    s_lshl_b32 s66, s66, 13
    s_add_u32 s{S_OFF}, s66, s68
    """)
    e0 = (stamp(1) if stamp else []) + block(f"""
    s_waitcnt lgkmcnt(0)
    v_lshlrev_b32 v1, 4, v0                 ; lane*16
    v_lshrrev_b32 v2, 4, v0
    v_lshlrev_b32 v2, 6, v2                 ; G*64 : v swizzle mask
    s_lshl_b32 s67, s{S_MT}, 4
    s_lshl_b32 s66, s{S_WM}, 3
    s_add_u32 s67, s67, s66
    s_lshl_b32 s67, s67, 10
    s_add_u32 s67, s67, {WS_QKV}            ; qkv base + tb0*1024
    s_lshl_b32 s68, s{S_MT}, 1
    s_add_u32 s68, s68, s{S_WM}
    s_mul_i32 s68, s68, {144*8192}
    s_add_u32 s68, s68, {WS_HO}
    s_mov_b32 s{S_NL}, {f2u(-math.log2(math.e))}
    s_mov_b32 s{S_NL+1}, s{S_NL}
    """)
    e0 += qkv_setup(S_C0) + epi_qkv(0, S_OFF, S_SC, 3, [4, 4])
    e0 += block(f"""
    s_cmp_eq_u32 s{S_TYPE}, 1
    s_cbranch_scc1 L_{name}_B
    """)
    eA = pair_setup(S_C1) + epi_pair(1, 2, S_OFF, S_NL, 1, [4 - 16, 4 - 16]) + [I(f"s_branch L_{name}_C")]
    labB = I(f"L_{name}_B:")
    eB = qkv_setup(S_C1) + epi_qkv(1, S_OFF, S_SC, 3, [4, 4]) + qkv_setup(S_C2) + epi_qkv(2, S_OFF, S_SC, 3, [4, 4])
    labC = I(f"L_{name}_C:")
    eC = pair_setup(S_G34) + epi_pair_last(S_OFF, S_NL, 1)
    end = (stamp(2) if stamp else []) + [I(f"L_{name}_end:"), I("s_endpgm")]
    P.add(pre, lab, body, e0, eA, labB, eB, labC, eC, end)
    P.trace(pre, body, body, e0, eA, eC, end)
    P.trace(pre, body, body, e0, eB, eC, end)
    txt = P.finish()
    print(name, "loop waits/nops", P.stats(body), "instrs", len(body))
    return txt, kd(name, 256, 160, 96), dict(grid=256, block=256, lds=4 * STAGE)


def epi_pair_last(s_off, s_nl2e, v_addr):
    c = []
    for i in range(8):
        e = 16 + 32 * (i % 2)
        cp = 16 + 32 * 2
        g = []; u = []
        for nb in range(2):
            f, rr = acc(i, 6 + nb); g.append(to_vgpr(f, rr, cp + 4 * nb, c))
            f, rr = acc(i, 8 + nb); u.append(to_vgpr(f, rr, cp + 8 + 4 * nb, c))
        for nb in range(2):
            for h in range(2):
                c.append(I(f"v_pk_mul_f32 v[{e+4*nb+2*h}:{e+4*nb+2*h+1}], v[{g[nb]+2*h}:{g[nb]+2*h+1}], s[{s_nl2e}:{s_nl2e+1}]"))
        for q in range(8): c.append(I(f"v_exp_f32 v{e+q}, v{e+q}"))
        for nb in range(2):
            for h in range(2):
                c.append(I(f"v_pk_mul_f32 v[{u[nb]+2*h}:{u[nb]+2*h+1}], v[{g[nb]+2*h}:{g[nb]+2*h+1}], v[{u[nb]+2*h}:{u[nb]+2*h+1}]"))
        for q in range(4): c.append(I(f"v_pk_add_f32 v[{e+2*q}:{e+2*q+1}], v[{e+2*q}:{e+2*q+1}], 1.0 op_sel_hi:[1,0]"))
        for q in range(8): c.append(I(f"v_rcp_f32 v{e+q}, v{e+q}"))
        for nb in range(2):
            for h in range(2):
                c.append(I(f"v_pk_mul_f32 v[{u[nb]+2*h}:{u[nb]+2*h+1}], v[{u[nb]+2*h}:{u[nb]+2*h+1}], v[{e+4*nb+2*h}:{e+4*nb+2*h+1}]"))
        for nb in range(2):
            for h in range(2):
                c.append(I(f"v_cvt_pk_bf16_f32 v{e+8+2*nb+h}, v{u[nb]+2*h}, v{u[nb]+2*h+1}"))
        if i == 4: c.append(I(f"s_add_u32 s{s_off}, s{s_off}, 4096"))
        c.append(I(f"buffer_store_dwordx4 v[{e+8}:{e+11}], v{v_addr}, s[{S_SRDO}:{S_SRDO+3}], s{s_off} offen offset:{(i%4)*1024}{STF[0]}"))
    return c
```

```python
from asmlib import *
from k_ln import WS_XN, WS_QKV, WS_HO, WS_END, WS_FLAG

CFG = dict(lag=3, prioA=0, prioB=0, bpos=None, m32=False)
SLOT = 16384
WRING = 4 * SLOT
LDS_CNT = 160 * 1024 - 16
RING = 6

V_KA, V_VA0 = 1, 2
V_SEL, V_S, V_X, V_P = 8, 16, 48, 64
A_Q, A_O, A_L, A_K, A_V = 0, 16, 48, 56, 72
S_W = 3
S_SRDW, S_QOFF, S_OOFF, S_LOOP, S_QT, S_HEAD = 8, 12, 13, 14, 15, 16


def k_read(T):
    T %= 16
    base = (T >> 2) * SLOT + (T & 3) * 2048
    d = A_K + 8 * (T & 1)
    return [I(f"ds_read_b128 a[{d+4*m}:{d+4*m+3}], v{V_KA} offset:{base + m*512}") for m in range(2)]


def v_read(T):
    T %= 16
    base = (T >> 2) * SLOT + 8192 + (T & 3) * 2048
    d = A_V + 8 * (T & 1)
    return [I(f"ds_read_b64_tr_b16 a[{d+4*m+2*z}:{d+4*m+2*z+1}], v{V_VA0+z} offset:{base + m*1024}") for m in range(2) for z in range(2)]


def qk(u):
    T, qb = u >> 1, u & 1
    s = V_S + 16 * (u & 1); k = A_K + 8 * (T & 1); q = A_Q + 8 * qb
    return [I(f"v_mfma_f32_32x32x16_bf16 v[{s}:{s+15}], a[{k}:{k+3}], a[{q}:{q+3}], 0"),
            I(f"v_mfma_f32_32x32x16_bf16 v[{s}:{s+15}], a[{k+4}:{k+7}], a[{q+4}:{q+7}], v[{s}:{s+15}]")]


def pv(u):
    T, qb = u >> 1, u & 1
    o = A_O + 16 * qb; v = A_V + 8 * (T & 1); p = V_P + 8 * (u & 1); l = A_L + 4 * qb
    return ([I(f"v_mfma_f32_32x32x16_bf16 a[{o}:{o+15}], a[{v+4*m}:{v+4*m+3}], v[{p+4*m}:{p+4*m+3}], a[{o}:{o+15}]") for m in range(2)],
            [I(f"v_mfma_f32_16x16x32_bf16 a[{l}:{l+3}], v[{V_SEL}:{V_SEL+3}], v[{p+4*m}:{p+4*m+3}], a[{l}:{l+3}]") for m in range(2)])


def cvt(u, j):
    p = V_P + 8 * (u & 1)
    return I(f"v_cvt_pk_bf16_f32 v{p+j}, v{V_X+2*j}, v{V_X+2*j+1}")


def slot_code(u, shadows):
    s = V_S + 16 * (u & 1); lag = CFG["lag"]
    A = qk(u + 1); PV, SM = pv(u - 1)
    after = {}
    for j in range(8):
        k = 2 * j + 1 + lag
        if k < 16: after.setdefault(k, []).append(cvt(u, j))
        else: after.setdefault(k - 16, []).append(cvt(u - 1, j))
    mf = [(A[0], 32), (A[1], 32), (PV[0], 32), (SM[0], 16), (PV[1], 32), (SM[1], 16)]
    seq = []; t = 0; free = 0; va = []; n = 0
    for r in range(16):
        va.append((I(f"v_exp_f32 v{V_X+r}, v{s+r}"), 8))
        for x in after.get(r, []): va.append((x, 4))
    gap = CFG.get("gap", 0)
    for x, c in va:
        if mf and t >= free:
            m, d = mf.pop(0); seq.append(m); free = t + d + gap; t += 8
            for y in shadows[n]:
                seq.append(y)
                if y.kind == "ds_rd": t += 4
            n += 1
        seq.append(x); t += c
    assert not mf
    return seq


def a_chunk(c):
    out = []
    for t in range(8):
        u = 8 * c + t; T = u >> 1
        sh = [[] for _ in range(6)]
        if t % 2 == 1:
            rd = k_read(T + 2) + v_read(T + 1)
            sh = [[x] for x in rd]
        else:
            sh[5] = [WAITLG()]
            if t == 4: sh[1] = [I("s_barrier")]
        out += slot_code(u, sh)
    return out


V_A0, V_A1 = 1, 2
V_DW = [3, 4, 5, 6]
V_DK = 7
V_WR = [8, 9, 10, 11]
V_WF, V_AR, V_XR = 16, 48, 112
SB_SRDA, SB_SRDW, SB_SRDK, SB_SRDV, SB_SRDX, SB_SRDO, SB_SRDF = 20, 24, 28, 32, 36, 40, 44
SB_AOFF, SB_WOFF, SB_KOFF, SB_M0W, SB_M0K, SB_XOFF, SB_WO, SB_WO0, SB_FOFF = 48, 49, 50, 51, 52, 53, 54, 56, 57


def kv_dma(slot):
    tag = f"KV{slot}"
    return [I(f"s_add_u32 m0, s{SB_M0K}, {slot*SLOT}"),
            I(f"s_nop 0"),
            I(f"buffer_load_dwordx4 v{V_DK}, s[{SB_SRDK}:{SB_SRDK+3}], s{SB_KOFF} offen lds", tag),
            I(f"buffer_load_dwordx4 v{V_DK}, s[{SB_SRDK}:{SB_SRDK+3}], s{SB_KOFF} offen offset:1024 lds", tag),
            I(f"s_add_u32 m0, s{SB_M0K}, {slot*SLOT+8192}"),
            I(f"s_nop 0"),
            I(f"buffer_load_dwordx4 v{V_DK}, s[{SB_SRDV}:{SB_SRDV+3}], s{SB_KOFF} offen lds", tag),
            I(f"buffer_load_dwordx4 v{V_DK}, s[{SB_SRDV}:{SB_SRDV+3}], s{SB_KOFF} offen offset:1024 lds", tag),
            I(f"s_add_u32 s{SB_KOFF}, s{SB_KOFF}, 8192")]


def w_dma(s):
    slot = s % RING; tag = f"W{slot}"
    g = [I(f"s_add_u32 m0, s{SB_M0W}, {slot*4096}"), I("s_nop 0")]
    for c in range(4):
        g.append(I(f"buffer_load_dwordx4 v{V_DW[c]}, s[{SB_SRDW}:{SB_SRDW+3}], s{SB_WOFF} offen offset:{c*1024} lds", tag))
    g.append(I(f"s_add_u32 s{SB_WOFF}, s{SB_WOFF}, {4*65536}"))
    return g


def a_load(s, i, sc=""):
    d = V_AR + 32 * (s % 2) + 4 * i
    l = [I(f"buffer_load_dwordx4 v[{d}:{d+3}], v{V_A0 + (i >> 2)}, s[{SB_SRDA}:{SB_SRDA+3}], s{SB_AOFF} offen offset:{(i&3)*1024}{sc}")]
    if i == 7: l.append(I(f"s_add_u32 s{SB_AOFF}, s{SB_AOFF}, {4*8192}"))
    return l


def w_reads(s):
    o = []
    for nb in range(4):
        d = V_WF + 16 * (s % 2) + 4 * nb
        for q in range(2):
            o.append(I(f"ds_read_b64_tr_b16 v[{d+2*q}:{d+2*q+1}], v{V_WR[nb]} offset:{(s%RING)*4096 + q*2048}"))
    return o


def b_step(s, wd=(), a_next=True, sc="", extra=None, rd_next=True):
    main = []
    for i in range(8):
        order = range(4) if i % 2 == 0 else range(3, -1, -1)
        ab = V_AR + 32 * (s % 2) + 4 * i
        for nb in order:
            r = 4 * (i * 4 + nb); wb = V_WF + 16 * (s % 2) + 4 * nb
            main.append(I(f"v_mfma_f32_16x16x32_bf16 a[{r}:{r+3}], v[{wb}:{wb+3}], v[{ab}:{ab+3}], a[{r}:{r+3}]"))
    fill = {}
    def put(g, l): fill.setdefault(g, []).extend(l if isinstance(l, list) else [l])
    for g, l in (extra or {}).items(): put(g, l)
    for n, w in enumerate(wd): put(1 + 4 * n, w_dma(w))
    if rd_next:
        put(8, WAITVM(f"W{(s+1)%RING}"))
        for k, x in enumerate(w_reads(s + 1)): put(8 + 2 * k, x)
    if a_next:
        for i in range(8): put(4 * i + 3, a_load(s + 2, i, sc))
    return weave(main, fill)


def bar(c):
    return [WAITVM(f"KV{(c+1)%4}"), I("s_barrier")] + kv_dma((c + 3) % 4)


def gen_k2(name, stamp=None, cfg=None):
    CFG.update(cfg or {})
    P = Program()
    pre = (stamp("entry") if stamp else []) + block(f"""
    s_cmp_ge_u32 s2, 256
    s_cbranch_scc1 L_{name}_end
    s_load_dwordx2 s[4:5], s[0:1], 0        ; x
    s_load_dwordx2 s[{SB_WO}:{SB_WO+1}], s[0:1], 16   ; wo
    s_load_dwordx4 s[60:63], s[0:1], 48     ; w_down, out
    s_load_dwordx2 s[6:7], s[0:1], 72       ; ws
    v_lshrrev_b32 v5, 6, v0
    v_and_b32 v0, 63, v0
    v_readfirstlane_b32 s{S_W}, v5
    s_and_b32 s64, s2, 7                    ; xcd
    s_lshl_b32 s{S_HEAD}, s64, 2
    s_bfe_u32 s65, s2, 0x20003
    s_add_u32 s{S_HEAD}, s{S_HEAD}, s65     ; head
    s_lshr_b32 s{S_QT}, s2, 5               ; q tile
    s_cmp_ge_u32 s{S_W}, 4
    s_cbranch_scc1 L_{name}_B
    """)
    a_pre = block(f"""
    s_lshl_b32 s32, s{S_HEAD}, 17
    s_lshl_b32 s33, s{S_QT}, 14
    s_lshl_b32 s34, s{S_W}, 12
    s_add_u32 s33, s33, s34
    s_add_u32 s{S_QOFF}, s32, s33
    s_add_u32 s{S_QOFF}, s{S_QOFF}, {WS_QKV}
    s_lshl_b32 s33, s{S_QT}, 1
    s_lshr_b32 s34, s{S_W}, 1
    s_add_u32 s33, s33, s34                 ; mt128
    s_mul_i32 s33, s33, 144
    s_add_u32 s33, s33, s{S_HEAD}
    s_add_u32 s33, s33, 112
    s_lshl_b32 s33, s33, 13
    s_and_b32 s34, s{S_W}, 1
    s_lshl_b32 s34, s34, 12
    s_add_u32 s33, s33, s34
    s_add_u32 s{S_OOFF}, s33, {WS_HO}
    v_bfe_u32 v5, v0, 4, 1
    v_lshrrev_b32 v6, 5, v0                 ; hh
    v_and_b32 v7, 15, v0
    v_lshlrev_b32 v{V_KA}, 10, v5
    v_lshl_add_u32 v{V_KA}, v6, 8, v{V_KA}
    v_lshl_add_u32 v{V_KA}, v7, 4, v{V_KA}
    s_waitcnt lgkmcnt(0)
    """)
    a_pre += srd(S_SRDW, 6, WS_END)
    for qb in range(2):
        for m in range(2):
            d = A_Q + 8 * qb + 4 * m
            a_pre.append(I(f"buffer_load_dwordx4 a[{d}:{d+3}], v{V_KA}, s[{S_SRDW}:{S_SRDW+3}], s{S_QOFF} offen offset:{qb*2048+m*512}"))
    a_pre += block(f"""
    v_and_b32 v7, 3, v0                     ; c
    v_xor_b32 v6, v6, v7                    ; hh ^ c
    v_lshlrev_b32 v{V_VA0}, 8, v7
    v_lshl_add_u32 v{V_VA0}, v6, 6, v{V_VA0}
    v_bfe_u32 v7, v0, 2, 2
    v_lshl_add_u32 v{V_VA0}, v7, 4, v{V_VA0}
    v_lshl_add_u32 v{V_VA0}, v5, 3, v{V_VA0}
    v_xor_b32 v{V_VA0+1}, 128, v{V_VA0}
    v_bfe_u32 v6, v0, 2, 1
    v_cmp_eq_u32 vcc, v5, v6
    v_mov_b32 v7, 0x3f803f80
    v_cndmask_b32 v{V_SEL}, 0, v7, vcc
    v_mov_b32 v{V_SEL+1}, v{V_SEL}
    v_mov_b32 v{V_SEL+2}, v{V_SEL}
    v_mov_b32 v{V_SEL+3}, v{V_SEL}
    s_mov_b32 s{S_LOOP}, 4
    """)
    for r in list(range(A_O, A_O + 40)) + list(range(A_V + 8, A_V + 16)): a_pre.append(I(f"v_accvgpr_write_b32 a{r}, 0"))
    for r in list(range(V_P + 8, V_P + 16)) + list(range(V_X, V_X + 16)): a_pre.append(I(f"v_mov_b32 v{r}, 0"))
    if CFG["prioA"]: a_pre.append(I(f"s_setprio {CFG['prioA']}"))
    a_pre += [I("s_waitcnt vmcnt(0)"), I("s_barrier")]
    if stamp: a_pre += stamp(0)
    a_pre += k_read(0) + k_read(1) + v_read(0) + qk(0) + [WAITLG(), I("s_nop 9")]
    a_body = []
    for c in range(4): a_body += a_chunk(c)
    a_body += block(f"""
    s_sub_u32 s{S_LOOP}, s{S_LOOP}, 1
    s_cmp_lg_u32 s{S_LOOP}, 0
    s_cbranch_scc1 L_{name}_aloop
    """)
    PV, SM = pv(31)
    a_post = [cvt(31, j) for j in range(8) if 2 * j + 1 + CFG["lag"] >= 16] + [PV[0], SM[0], PV[1], SM[1]]
    if stamp: a_post += stamp(1)
    for qb in range(2):
        o = 16 + 16 * qb; l = 4 + qb; t = 48 + 8 * qb
        a_post.append(I(f"v_accvgpr_read_b32 v{l}, a{A_L+4*qb}"))
        for r in range(16): a_post.append(I(f"v_accvgpr_read_b32 v{o+r}, a{A_O+16*qb+r}"))
        a_post.append(I(f"v_rcp_f32 v{l}, v{l}"))
        for r in range(16): a_post.append(I(f"v_mul_f32 v{o+r}, v{o+r}, v{l}"))
        for g in range(2):
            for n, a in enumerate((g, g + 2)):
                for h in range(2):
                    a_post.append(I(f"v_cvt_pk_bf16_f32 v{t+4*g+2*n+h}, v{o+4*a+2*h}, v{o+4*a+2*h+1}"))
            a_post.append(I(f"buffer_store_dwordx4 v[{t+4*g}:{t+4*g+3}], v{V_KA}, s[{S_SRDW}:{S_SRDW+3}], s{S_OOFF} offen offset:{qb*2048+g*512} sc1"))
    a_post += block(f"""
    s_lshl_b32 s33, s{S_QT}, 1
    s_lshr_b32 s34, s{S_W}, 1
    s_add_u32 s33, s33, s34
    s_lshl_b32 s33, s33, 8
    s_add_u32 s33, s33, {WS_FLAG}
    v_mov_b32 v4, 1
    v_mov_b32 v5, 0
    s_waitcnt vmcnt(0)
    s_mov_b64 exec, 1
    buffer_atomic_add v4, v5, s[{S_SRDW}:{S_SRDW+3}], s33 offen sc1
    s_mov_b64 exec, -1
    """)
    a_end = (stamp(2) if stamp else []) + [I("s_endpgm")]
    b_pre = block(f"""
    s_sub_u32 s66, s{S_W}, 4                ; b wave
    s_lshr_b32 s67, s2, 3
    s_lshr_b32 s68, s64, 1
    s_lshl_b32 s68, s68, 2
    s_and_b32 s69, s67, 3
    s_add_u32 s68, s68, s69                 ; mt128
    s_and_b32 s69, s64, 1
    s_lshl_b32 s69, s69, 3
    s_lshr_b32 s70, s67, 2
    s_add_u32 s69, s69, s70                 ; nt
    s_lshl_b32 s{SB_AOFF}, s66, 13
    s_lshl_b32 s{SB_WOFF}, s66, 16
    s_mov_b32 s{SB_WO0}, s{SB_WOFF}
    s_mul_i32 s{SB_M0W}, s66, {RING*4096}
    s_add_u32 s{SB_M0W}, s{SB_M0W}, {WRING}
    s_lshl_b32 s{SB_M0K}, s66, 11
    s_mov_b32 s{SB_KOFF}, 0
    s_lshl_b32 s{SB_FOFF}, s68, 8
    s_add_u32 s{SB_FOFF}, s{SB_FOFF}, {WS_FLAG}
    v_lshlrev_b32 v{V_A0}, 4, v0
    v_add_u32 v{V_A1}, 4096, v{V_A0}
    v_add_u32 v{V_DK}, s{SB_M0K}, v{V_A0}
    v_and_b32 v14, 7, v0                    ; pos
    v_bfe_u32 v15, v0, 4, 1
    v_lshlrev_b32 v15, 2, v15
    v_xor_b32 v14, v14, v15
    v_bfe_u32 v15, v0, 5, 1
    v_lshlrev_b32 v15, 1, v15
    v_xor_b32 v14, v14, v15
    v_lshlrev_b32 v14, 4, v14
    v_lshrrev_b32 v13, 3, v0
    v_lshl_add_u32 v14, v13, 11, v14
    s_lshl_b32 s70, s69, 7
    v_add_u32 v{V_DW[0]}, s70, v14
    v_add_u32 v{V_DW[1]}, {15360}, v{V_DW[0]}
    v_add_u32 v{V_DW[2]}, {2*15360}, v{V_DW[0]}
    v_add_u32 v{V_DW[3]}, {3*15360}, v{V_DW[0]}
    s_mul_i32 s71, s68, {144*8192}
    s_add_u32 s71, s71, {WS_HO}
    s_lshl_b32 s72, s{S_HEAD}, 17
    s_add_u32 s72, s72, {WS_QKV + (4 << 20)}
    s_waitcnt lgkmcnt(0)
    s_add_u32 s{SB_SRDK}, s6, s72
    s_addc_u32 s{SB_SRDK+1}, s7, 0
    s_mov_b32 s{SB_SRDK+2}, 131072
    s_mov_b32 s{SB_SRDK+3}, 0x20000
    s_add_u32 s{SB_SRDV}, s{SB_SRDK}, {4 << 20}
    s_addc_u32 s{SB_SRDV+1}, s{SB_SRDK+1}, 0
    s_mov_b32 s{SB_SRDV+2}, 131072
    s_mov_b32 s{SB_SRDV+3}, 0x20000
    """)
    b_pre += kv_dma(0)
    b_pre += block(f"""
    s_add_u32 s{SB_SRDA}, s6, s71
    s_addc_u32 s{SB_SRDA+1}, s7, 0
    s_mov_b32 s{SB_SRDA+2}, {144*8192}
    s_mov_b32 s{SB_SRDA+3}, 0x20000
    """)
    b_pre += srd(SB_SRDW, 60, 3584 * 2048) + srd(SB_SRDX, 4, 4194304) + srd(SB_SRDO, 62, 4194304) + srd(SB_SRDF, 6, WS_END)
    b_pre += kv_dma(1) + w_dma(0)
    for i in range(8): b_pre += a_load(0, i)
    b_pre += kv_dma(2) + w_dma(1)
    for i in range(8): b_pre += a_load(1, i)
    b_pre += w_dma(2) + w_dma(3)
    b_pre += block(f"""
    v_bfe_u32 v13, v0, 2, 3                 ; rho
    v_lshlrev_b32 v14, 7, v13
    v_lshrrev_b32 v15, 5, v0
    v_lshl_add_u32 v14, v15, 10, v14
    v_and_b32 v15, 3, v0
    v_lshl_add_u32 v14, v15, 3, v14
    v_add_u32 v14, s{SB_M0W}, v14
    v_bfe_u32 v15, v0, 3, 1
    v_lshlrev_b32 v15, 1, v15
    v_bfe_u32 v13, v0, 4, 1
    v_or_b32 v15, v15, v13
    v_lshl_add_u32 v{V_WR[0]}, v15, 5, v14
    v_xor_b32 v{V_WR[1]}, 32, v{V_WR[0]}
    v_xor_b32 v{V_WR[2]}, 64, v{V_WR[0]}
    v_xor_b32 v{V_WR[3]}, 96, v{V_WR[0]}
    s_mov_b32 s{S_LOOP}, 4
    s_lshl_b32 s71, s68, 18
    s_lshl_b32 s72, s66, 16
    s_add_u32 s71, s71, s72
    s_add_u32 s{SB_XOFF}, s71, s70
    """)
    for r in range(128): b_pre.append(I(f"v_accvgpr_write_b32 a{r}, 0"))
    if CFG["prioB"]: b_pre.append(I(f"s_setprio {CFG['prioB']}"))
    b_pre += [WAITVM("KV0"), I("s_barrier")]
    if stamp: b_pre += stamp(0)
    b_pre += [WAITVM("W0")] + w_reads(0)
    bpos = CFG["bpos"] or [(0, 24), (2, 8), (3, 24), (5, 8)]
    b_body = []
    for s in range(6):
        ex = {g: bar(c) for c, (st, g) in enumerate(bpos) if st == s}
        b_body += b_step(s, wd=[s + 4], extra=ex)
    b_body += block(f"""
    s_sub_u32 s{S_LOOP}, s{S_LOOP}, 1
    s_cmp_lg_u32 s{S_LOOP}, 0
    s_cbranch_scc1 L_{name}_bloop
    """)
    sw = block(f"""
    s_mov_b32 s{SB_SRDW}, s{SB_WO}
    s_mov_b32 s{SB_SRDW+1}, s{SB_WO+1}
    s_mov_b32 s{SB_SRDW+2}, 2097152
    s_mov_b32 s{SB_WOFF}, s{SB_WO0}
    s_add_u32 s73, s{SB_XOFF}, 16384
    s_add_u32 s74, s{SB_XOFF}, 32768
    s_add_u32 s75, s{SB_XOFF}, 49152
    v_lshrrev_b32 v12, 3, v0
    v_and_b32 v13, 7, v0
    v_lshlrev_b32 v14, 11, v12
    v_lshl_add_u32 v14, v13, 4, v14
    """)
    for g, so in enumerate((SB_XOFF, 73, 74, 75)):
        sw.append(I(f"buffer_load_dwordx4 v[{V_XR+4*g}:{V_XR+4*g+3}], v14, s[{SB_SRDX}:{SB_SRDX+3}], s{so} offen"))
    t1 = sw + b_step(24, wd=[28, 29]) + b_step(25, wd=[30]) + b_step(26, wd=[31], a_next=False) + b_step(27, wd=[32], a_next=False)
    if stamp: t1 += stamp(1)
    poll0 = block(f"""
    s_cmp_lg_u32 s{S_W}, 4
    s_cbranch_scc1 L_{name}_polled
    v_mov_b32 v15, 0
    s_mov_b32 s77, 0x100000
    """)
    poll = block(f"""
    buffer_load_dword v12, v15, s[{SB_SRDF}:{SB_SRDF+3}], s{SB_FOFF} offen sc1
    s_waitcnt vmcnt(0)
    v_readfirstlane_b32 s76, v12
    s_cmp_ge_u32 s76, 64
    s_cbranch_scc1 L_{name}_polled
    s_sleep 2
    s_sub_u32 s77, s77, 1
    s_cmp_lg_u32 s77, 0
    s_cbranch_scc1 L_{name}_poll
    """)
    t2 = [I("s_barrier")]
    for s in (28, 29):
        for i in range(8): t2 += a_load(s, i, " sc1")
    for s in range(28, 36):
        t2 += b_step(s, wd=[s + 5] if s + 5 < 36 else [], a_next=(s + 2 < 36), sc=" sc1", rd_next=(s + 1 < 36))
    t2 += block(f"""
    v_lshrrev_b32 v1, 3, v0                 ; tt
    v_and_b32 v2, 7, v0                     ; z
    v_lshrrev_b32 v4, 4, v0                 ; G
    v_and_b32 v5, 15, v0                    ; t
    v_and_b32 v6, 2, v4
    v_xor_b32 v5, v5, v6
    v_lshlrev_b32 v5, 4, v5
    v_lshl_add_u32 v5, v4, 8, v5
    s_lshl_b32 s73, s66, 15
    v_add_u32 v8, s73, v5
    v_xor_b32 v9, 64, v8
    v_xor_b32 v10, 128, v8
    v_xor_b32 v11, 192, v8
    v_lshlrev_b32 v4, 1, v2
    v_xor_b32 v4, v4, v1
    v_lshlrev_b32 v4, 4, v4
    v_lshrrev_b32 v5, 1, v2
    v_lshl_add_u32 v4, v5, 10, v4
    v_and_b32 v5, 1, v2
    v_lshl_add_u32 v4, v5, 9, v4
    s_lshl_b32 s73, s66, 13
    v_add_u32 v4, s73, v4
    v_xor_b32 v5, 128, v4
    v_add_u32 v6, 65536, v4
    v_add_u32 v7, 65536, v5
    s_waitcnt vmcnt(0) lgkmcnt(0)
    s_barrier
    """)
    for i in range(8):
        for nb in range(4):
            r = 4 * (i * 4 + nb)
            t2.append(I(f"ds_write_b128 v{8+nb}, a[{r}:{r+3}] offset:{i*4096+nb*1024}"))
    t2 += [WAITLG(), I("s_barrier")]
    def rd(g):
        ib, hf = g >> 1, g & 1; b = 16 + 32 * (g % 3)
        return [I(f"ds_read_b128 v[{b+8*sw+4*e}:{b+8*sw+4*e+3}], v{4+hf+2*(sw>>1)} offset:{(sw&1)*32768+ib*4096+e*256}") for sw in range(4) for e in range(2)]
    def fin(g):
        b = 16 + 32 * (g % 3); o = []
        for r in range(0, 8, 2):
            o.append(I(f"v_pk_add_f32 v[{b+r}:{b+r+1}], v[{b+r}:{b+r+1}], v[{b+8+r}:{b+9+r}]"))
            o.append(I(f"v_pk_add_f32 v[{b+16+r}:{b+17+r}], v[{b+16+r}:{b+17+r}], v[{b+24+r}:{b+25+r}]"))
        for r in range(4):
            o.append(I(f"v_lshlrev_b32 v{b+8+2*r}, 16, v{V_XR+4*g+r}"))
            o.append(I(f"v_and_b32 v{b+9+2*r}, 0xffff0000, v{V_XR+4*g+r}"))
        for r in range(0, 8, 2):
            o.append(I(f"v_pk_add_f32 v[{b+r}:{b+r+1}], v[{b+r}:{b+r+1}], v[{b+16+r}:{b+17+r}]"))
        for r in range(0, 8, 2):
            o.append(I(f"v_pk_add_f32 v[{b+r}:{b+r+1}], v[{b+r}:{b+r+1}], v[{b+8+r}:{b+9+r}]"))
        for r in range(4):
            o.append(I(f"v_cvt_pk_bf16_f32 v{b+16+r}, v{b+2*r}, v{b+2*r+1}"))
        o.append(I(f"s_add_u32 s73, s{SB_XOFF}, {g*16384}"))
        o.append(I(f"buffer_store_dwordx4 v[{b+16}:{b+19}], v14, s[{SB_SRDO}:{SB_SRDO+3}], s73 offen"))
        return o
    t2 += rd(0) + rd(1) + fin(0) + rd(2) + fin(1) + rd(3) + fin(2) + fin(3)
    end = (stamp(2) if stamp else []) + [I(f"L_{name}_end:"), I("s_endpgm")]
    L = lambda n: I(f"L_{name}_{n}:")
    P.add(pre, a_pre, L("aloop"), a_body, a_post, a_end, L("B"), b_pre, L("bloop"), b_body, t1, poll0, L("poll"), poll, L("polled"), t2, end)
    P.trace(pre, a_pre, a_body, a_body, a_post, a_end)
    P.trace(pre, b_pre, b_body, b_body, t1, poll0, t2, end)
    P.trace(pre, b_pre, b_body, b_body, t1, poll0, poll, poll, t2, end)
    txt = P.finish()
    print(name, "A loop waits/nops", P.stats(a_body), len(a_body), "B loop", P.stats(b_body), len(b_body))
    return txt, kd(name, 128, 128, 96), dict(grid=256, block=512, lds=160 * 1024)
```

```python
from asmlib import *

WS_XN = 0
WS_QKV = 4 << 20
WS_HO = 16 << 20
WS_FLAG = WS_HO + 16 * 144 * 8192
WS_END = WS_FLAG + 4096


def reduce_p(v, t):
    return block(f"""
    v_add_f32_dpp v{v}, v{v}, v{v} row_ror:8 row_mask:0xf bank_mask:0xf
    v_mov_b32 v{t}, v{v}
    v_permlane16_swap_b32 v{v}, v{t}
    v_add_f32 v{v}, v{v}, v{t}
    v_mov_b32 v{t}, v{v}
    v_permlane32_swap_b32 v{v}, v{t}
    v_add_f32 v{v}, v{v}, v{t}
    """)


def gen_ln(name, stamp=None):
    P = Program()
    c = stamp('entry') + stamp(0) + stamp(1) if stamp else []
    c += block(f"""
    s_cmp_ge_u32 s2, 256
    s_cbranch_scc1 L_{name}_end
    s_load_dwordx2 s[4:5], s[0:1], 0
    s_load_dwordx2 s[6:7], s[0:1], 72
    v_and_b32 v1, 7, v0                 ; t
    v_bfe_u32 v2, v0, 3, 3              ; p
    v_lshrrev_b32 v3, 6, v0             ; w
    s_lshl_b32 s3, s2, 14
    v_lshlrev_b32 v4, 11, v1
    v_lshl_add_u32 v4, v3, 9, v4        ; + w*512
    v_lshl_add_u32 v4, v2, 4, v4        ; + p*16
    """)
    c += srd(8, 4, 4194304) + srd(12, 6, WS_END)
    for j in range(4):
        c.append(I(f"buffer_load_dwordx4 v[{8+4*j}:{11+4*j}], v4, s[8:11], s3 offen offset:{128*j}"))
    c += block(f"""
    s_cmp_ge_u32 s2, 4
    s_cbranch_scc1 L_{name}_noz
    """)
    c0 = c
    cz = block(f"""
    s_lshl_b32 s16, s2, 10
    s_add_u32 s16, s16, {WS_FLAG}
    v_lshlrev_b32 v5, 2, v0
    v_mov_b32 v6, 0
    buffer_store_dword v6, v5, s[12:15], s16 offen
    L_{name}_noz:
    """)
    c = []
    c += block(f"""
    s_lshr_b32 s16, s2, 5
    s_lshl_b32 s16, s16, 19             ; mt*32*16*1024
    s_bfe_u32 s17, s2, 0x40001          ; (wg>>1)&15
    s_lshl_b32 s17, s17, 10
    s_add_u32 s16, s16, s17
    s_and_b32 s17, s2, 1
    s_lshl_b32 s17, s17, 7              ; (wg&1)*8*16
    s_add_u32 s16, s16, s17
    v_lshrrev_b32 v5, 2, v2             ; p>>2
    v_lshl_add_u32 v5, v3, 3, v5        ; 8w + (p>>2)
    v_lshlrev_b32 v5, 14, v5            ; *16KB
    v_and_b32 v6, 3, v2
    v_lshl_add_u32 v5, v6, 8, v5        ; + G*256
    v_lshl_add_u32 v5, v1, 4, v5        ; + t*16
    v_lshlrev_b32 v6, 4, v1
    v_lshl_add_u32 v7, v3, 2, v6
    """)
    for r in range(16):
        c.append(I(f"v_lshlrev_b32 v{32+2*r}, 16, v{8+r}"))
        c.append(I(f"v_and_b32 v{33+2*r}, 0xffff0000, v{8+r}"))
    for k in range(4):
        c.append(I(f"v_add_f32 v{24+k}, v{32+k}, v{36+k}"))
    for r in range(8, 32):
        c.append(I(f"v_add_f32 v{24+r%4}, v{24+r%4}, v{32+r}"))
    c += block("""
    v_add_f32 v24, v24, v25
    v_add_f32 v26, v26, v27
    v_add_f32 v24, v24, v26
    """)
    c += reduce_p(24, 25)
    c += block("""
    ds_write_b32 v7, v24
    s_waitcnt lgkmcnt(0)
    s_barrier
    ds_read_b128 v[24:27], v6
    v_add_f32 v24, v24, v25
    v_add_f32 v26, v26, v27
    v_add_f32 v24, v24, v26
    v_mul_f32 v28, 0x3a800000, v24
    """)
    for r in range(32):
        t = 8 + r % 8
        c.append(I(f"v_sub_f32 v{t}, v{32+r}, v28"))
        if r < 4: c.append(I(f"v_mul_f32 v{24+r}, v{t}, v{t}"))
        else: c.append(I(f"v_fmac_f32 v{24+r%4}, v{t}, v{t}"))
    c += block("""
    v_add_f32 v24, v24, v25
    v_add_f32 v26, v26, v27
    v_add_f32 v24, v24, v26
    """)
    c += reduce_p(24, 25)
    c += block("""
    ds_write_b32 v7, v24 offset:128
    v_cvt_pk_bf16_f32 v28, v28, v28
    v_lshlrev_b32 v28, 16, v28
    s_waitcnt lgkmcnt(0)
    s_barrier
    ds_read_b128 v[24:27], v6 offset:128
    """)
    for r in range(16):
        c.append(I(f"v_sub_f32 v{32+2*r}, v{32+2*r}, v28"))
        c.append(I(f"v_sub_f32 v{33+2*r}, v{33+2*r}, v28"))
        c.append(I(f"v_cvt_pk_bf16_f32 v{8+r}, v{32+2*r}, v{33+2*r}"))
    c += block("""
    v_add_f32 v24, v24, v25
    v_add_f32 v26, v26, v27
    v_add_f32 v24, v24, v26
    v_mul_f32 v24, 0x3a800000, v24      ; var
    v_cvt_pk_bf16_f32 v24, v24, v24
    v_lshlrev_b32 v24, 16, v24
    v_add_f32 v24, 0x3727c5ac, v24      ; + 1e-5
    v_cvt_pk_bf16_f32 v24, v24, v24
    v_lshlrev_b32 v24, 16, v24
    v_sqrt_f32 v24, v24
    v_cvt_pk_bf16_f32 v24, v24, v24
    v_lshlrev_b32 v24, 16, v24
    v_rcp_f32 v24, v24
    """)
    for j in range(4):
        for r in range(4 * j, 4 * j + 4):
            c.append(I(f"v_lshlrev_b32 v{32+2*r}, 16, v{8+r}"))
            c.append(I(f"v_and_b32 v{33+2*r}, 0xffff0000, v{8+r}"))
            c.append(I(f"v_mul_f32 v{32+2*r}, v{32+2*r}, v24"))
            c.append(I(f"v_mul_f32 v{33+2*r}, v{33+2*r}, v24"))
            c.append(I(f"v_cvt_pk_bf16_f32 v{8+r}, v{32+2*r}, v{33+2*r}"))
        c.append(I(f"s_add_u32 s17, s16, {WS_XN + j * 32768}"))
        c.append(I(f"buffer_store_dwordx4 v[{8+4*j}:{11+4*j}], v5, s[12:15], s17 offen"))
    if stamp: c += [I("v_readfirstlane_b32 s20, v3")] + stamp(2)
    c += [I(f"L_{name}_end:"), I("s_endpgm")]
    P.add(c0, cz, c); P.trace(c0, cz, c); P.trace(c0, c)
    return P.finish(), kd(name, 64, 0, 96), dict(grid=256, block=256, lds=256)
```

```python
from gen import *
import k_gemm1, k_k2, sys
def build(path, st, g1cfg, k2cfg):
    base = dict(lag=3, prioA=0, prioB=0, bpos=None, gap=0)
    ks = [("ln_kernel", gen_ln("ln_kernel", stamp=make_stamp(0, 3, 20) if st else None)),
          ("gemm1_kernel", k_gemm1.gen_gemm1("gemm1_kernel", cfg=g1cfg, stamp=make_stamp(1, 3, k_gemm1.S_W) if st else None)),
          ("k2_kernel", k_k2.gen_k2("k2_kernel", stamp=make_stamp(4, 3, k_k2.S_W, 3) if st else None, cfg=dict(base, **k2cfg)))]
    assemble_file(ks, path)
if __name__ == "__main__":
    build("g6_a.s", True, dict(stf=" sc1"), {})
    build("g6_pf.s", True, dict(stf=" sc1", pf=2), {})
    build("g6_pf_pa.s", True, dict(stf=" sc1", pf=2), dict(prioA=1))
    build("g6_pf_pb.s", True, dict(stf=" sc1", pf=2), dict(prioB=1))
    build("g6_a_ns.s", False, dict(stf=" sc1"), {})
    build("g6_pf_ns.s", False, dict(stf=" sc1", pf=2), {})
```
